```python
import torch

def _softmax(x, axis=-1):
    return torch.softmax(x, dim=axis)
def _gelu(x):
    return torch.nn.functional.gelu(x, approximate="tanh")
def _silu(x):
    return torch.nn.functional.silu(x)
def _sigmoid(x):
    return torch.sigmoid(x)
def _layernorm(x, axis=-1, eps=1e-5):
    m = x.mean(dim=axis, keepdim=True)
    v = x.var(dim=axis, keepdim=True, unbiased=False)
    return (x - m) / torch.sqrt(v + eps)
def _scatter_add(tgt, idx, src, axis=0):
    return tgt.clone().index_add_(axis, idx, src)
def _segment_sum(src, seg, n):
    out = torch.zeros((n,) + src.shape[1:], dtype=src.dtype)
    return out.index_add_(0, seg, src)
def _pad(x, pw):
    flat = tuple(v for pair in reversed(pw) for v in pair)
    return torch.nn.functional.pad(x, flat)

kernel_name = 'gated_mix__ssm_conv_s5__mixer_channel_mlp__prompt'

def setup_inputs():

    _w = (lambda a: (lambda t: t.to(torch.bfloat16) if t.is_floating_point() else t)(torch.as_tensor(a)))
    def _A_setup():
        B, S, D = 1, 2048, 512
        P = D
        Lambda_re = -0.5 * (lambda _x: torch.exp(torch.as_tensor(_x)))((lambda *s: torch.randn(*s, dtype=torch.bfloat16) * 0.4)(P))
        Lambda_im = (lambda *s: torch.randn(*s, dtype=torch.bfloat16) * 0.8)(P) * 1.0
        B_re = (lambda *s: torch.randn(*s, dtype=torch.bfloat16) * 0.8)(P, D) * (D ** -0.5)
        B_im = (lambda *s: torch.randn(*s, dtype=torch.bfloat16) * 0.8)(P, D) * (D ** -0.5)
        C_re = (lambda *s: torch.randn(*s, dtype=torch.bfloat16) * 0.8)(D, P) * (P ** -0.5)
        C_im = (lambda *s: torch.randn(*s, dtype=torch.bfloat16) * 0.8)(D, P) * (P ** -0.5)
        log_dt = (lambda *s: torch.randn(*s, dtype=torch.bfloat16) * 0.4)(P) * 0.3 - 2.0
        Dskip = (lambda *s: torch.randn(*s, dtype=torch.bfloat16) * 0.1)(D)
        return {
            "x": _w((lambda *s: torch.randn(*s, dtype=torch.bfloat16) * 0.05)(B, S, D)),
            "Lambda_re": _w(Lambda_re),
            "Lambda_im": _w(Lambda_im),
            "B_re": _w(B_re),
            "B_im": _w(B_im),
            "C_re": _w(C_re),
            "C_im": _w(C_im),
            "log_dt": _w(log_dt),
            "Dskip": _w(Dskip),
        }
    _A_in = _A_setup()

    def _B_setup():
        B, S, D, F = 1, 2048, 512, 1376
        return {
            "x": _w((lambda *s: torch.randn(*s, dtype=torch.bfloat16) * 0.05)(B, S, D)),
            "w1": _w((lambda *s: torch.randn(*s, dtype=torch.bfloat16) * 0.8)(D, F) * (D ** -0.5)),
            "b1": _w((lambda *s: torch.randn(*s, dtype=torch.bfloat16) * 0.4)(F)),
            "w2": _w((lambda *s: torch.randn(*s, dtype=torch.bfloat16) * 0.05)(F, D) * (F ** -0.5)),
            "b2": _w((lambda *s: torch.randn(*s, dtype=torch.bfloat16) * 0.05)(D)),
        }
    _B_in = _B_setup()

    return {
        "A_x": _A_in["x"],
        "A_Lambda_re": _A_in["Lambda_re"],
        "A_Lambda_im": _A_in["Lambda_im"],
        "A_B_re": _A_in["B_re"],
        "A_B_im": _A_in["B_im"],
        "A_C_re": _A_in["C_re"],
        "A_C_im": _A_in["C_im"],
        "A_log_dt": _A_in["log_dt"],
        "A_Dskip": _A_in["Dskip"],
        "B_x": _B_in["x"],
        "B_w1": _B_in["w1"],
        "B_b1": _B_in["b1"],
        "B_w2": _B_in["w2"],
        "B_b2": _B_in["b2"],
        "gate_w": _w((lambda *s: torch.randn(*s, dtype=torch.bfloat16) * 0.05)(512) * 16.0),
    }

def reference(A_x, A_Lambda_re, A_Lambda_im, A_B_re, A_B_im, A_C_re, A_C_im, A_log_dt, A_Dskip, B_x, B_w1, B_b1, B_w2, B_b2, gate_w):
    def _A_ref(x, Lambda_re, Lambda_im, B_re, B_im, C_re, C_im, log_dt, Dskip):
        Bsz, L, H = x.shape
        Lam = Lambda_re + 1j * Lambda_im
        Bmat = B_re + 1j * B_im
        Cmat = C_re + 1j * C_im
        dt = torch.exp(log_dt)
        Lam_bar = torch.exp(dt * Lam)
        B_bar = ((Lam_bar - 1.0) / Lam)[:, None] * Bmat
        Bu = torch.einsum("bld,pd->blp", x + 0j, B_bar)
        h = torch.zeros_like(Bu[:, 0, :])
        hs = []
        for t in range(L):
            h = Lam_bar[None, :] * h + Bu[:, t, :]
            hs.append(h)
        hseq = torch.stack(hs, 1)
        y = 2.0 * torch.einsum("blp,dp->bld", hseq, Cmat).real + x * Dskip[None, None, :]
        return y

    def _B_ref(x, w1, b1, w2, b2):
        y = _layernorm(x, axis=-1)
        h = _gelu(torch.einsum("bsd,df->bsf", y, w1) + b1)
        return torch.einsum("bsf,fd->bsd", h, w2) + b2

    x = A_x
    g = _sigmoid((x * gate_w).sum(-1, keepdims=True))
    a = _A_ref(x, A_Lambda_re, A_Lambda_im, A_B_re, A_B_im, A_C_re, A_C_im, A_log_dt, A_Dskip)
    b = _B_ref(x, B_w1, B_b1, B_w2, B_b2)
    return g * a + (1 - g) * b
```

```python
import re

class Asm:
    def __init__(self):
        self.lines = []
    def __call__(self, s=""):
        for l in s.split("\n"):
            l = l.strip()
            if l: self.lines.append(l)
    def label(self, n): self.lines.append(n + ":")
    def text(self):
        out = []
        for l in self.lines:
            if l.endswith(":") or l.startswith(".") or l.startswith(";"): out.append(l)
            else: out.append("    " + l)
        return "\n".join(out) + "\n"

def vr(a, n=1): return f"v{a}" if n == 1 else f"v[{a}:{a+n-1}]"
def sr(a, n=1): return f"s{a}" if n == 1 else f"s[{a}:{a+n-1}]"

_reg = re.compile(r"^(-|\|)?([vsa])(?:(\d+)|\[(\d+):(\d+)\])\|?$")
def regs(tok):
    tok = tok.strip()
    if tok in ("vcc",): return {("s", 106), ("s", 107)}
    if tok == "vcc_lo": return {("s",106)}
    if tok == "vcc_hi": return {("s",107)}
    if tok == "exec": return {("s", 126), ("s", 127)}
    if tok == "m0": return {("s", 124)}
    m = _reg.match(tok)
    if not m: return set()
    k = m.group(2)
    if m.group(3) is not None: return {(k, int(m.group(3)))}
    return {(k, i) for i in range(int(m.group(4)), int(m.group(5)) + 1)}

TRANS = ("v_exp_f32","v_log_f32","v_rcp_f32","v_rsq_f32","v_sqrt_f32","v_sin_f32","v_cos_f32")
def parse(l):
    l = l.split(";")[0].strip()
    mn, _, rest = l.partition(" ")
    ops = [o.strip() for o in rest.split(",")] if rest else []
    mods = ""
    if ops:
        parts = ops[-1].split(" ", 1)
    rest2 = re.sub(r"\s+(op_sel|op_sel_hi|neg_lo|neg_hi|quad_perm)\s*:\s*\[[^\]]*\]", "", rest)
    ops = [o.strip() for o in rest2.split(",")] if rest2 else []
    if ops:
        p = ops[-1].split()
        ops[-1] = p[0]; mods = " ".join(p[1:])
    return mn, ops, mods, rest

def classify(l):
    mn, ops, mods, rest = parse(l)
    d = dict(mn=mn, w=set(), r=set(), kind="other", passes=0, srcC=set(), ab=set(), dpp=("dpp" in mn or "quad_perm" in rest or "row_" in rest), store_data=set())
    R = [regs(o) for o in ops]
    if mn.startswith("v_mfma"):
        d["kind"] = "mfma"; d["w"] = R[0]; d["ab"] = R[1] | R[2]; d["srcC"] = R[3]; d["r"] = d["ab"] | d["srcC"]
        d["passes"] = 8 if "32x32x16" in mn else (4 if "16x16x32" in mn else 2)
    elif mn.startswith("v_cmp"):
        d["kind"] = "valu"; d["w"] = R[0]; d["r"] = set().union(*R[1:])
    elif mn.startswith("v_readfirstlane") or mn.startswith("v_readlane"):
        d["kind"] = "valu"; d["w"] = R[0]; d["r"] = set().union(*R[1:]); d["rdlane"] = True
    elif mn.startswith("v_swap") or mn.startswith("v_permlane"):
        d["kind"] = "valu"; d["w"] = R[0] | R[1]; d["r"] = R[0] | R[1]; d["perml"] = mn.startswith("v_permlane")
    elif mn.startswith("v_"):
        d["kind"] = "valu"; d["w"] = R[0]; d["r"] = set().union(*R[1:]) if len(R) > 1 else set()
        if "_co_" in mn: d["w"] = R[0] | R[1]; d["r"] = set().union(*R[2:])
        if mn.startswith("v_fmac") or mn.startswith("v_dot2c") or d["dpp"]: d["r"] |= R[0]
        if mn.startswith("v_cndmask") and len(ops) == 3: d["r"] |= regs("vcc")
        d["trans"] = any(mn.startswith(t) for t in TRANS)
        d["dot"] = mn.startswith("v_dot")
        if d["dot"]: d["ab2"] = R[1] | R[2]
    elif mn.startswith("ds_"):
        d["kind"] = "ds"
        if mn.startswith("ds_read") or mn.startswith("ds_bpermute"): d["w"] = R[0]; d["r"] = set().union(*R[1:])
        else: d["r"] = set().union(*R)
    elif mn.startswith("buffer_") or mn.startswith("global_"):
        d["kind"] = "vmem"
        lds = " lds" in (" " + mods)
        if "load" in mn and not lds: d["w"] = R[0]; d["r"] = set().union(*R[1:])
        else: d["r"] = set().union(*R)
        if lds: d["r"] |= regs("m0"); d["ldsdma"] = True
        if "store" in mn and ("x4" in mn or "x3" in mn):
            d["store_data"] = R[0] if mn.startswith("buffer_") else R[1]
    elif mn.startswith("s_"):
        d["kind"] = "salu"
        if mn.startswith("s_cmp") or mn.startswith("s_cbranch") or mn.startswith("s_branch") or mn in ("s_barrier","s_waitcnt","s_nop","s_endpgm","s_setprio","s_sleep") or mn.startswith("s_bitcmp"):
            d["r"] = set().union(*R) if R else set()
        else:
            d["w"] = R[0] if R else set(); d["r"] = set().union(*R[1:]) if len(R) > 1 else set()
            if "saveexec" in mn: d["w"] |= regs("exec")
        if mn == "s_nop": d["nop"] = int(ops[0], 0) + 1
    return d

def check_hazards(lines, name=""):
    ins = []
    for l in lines:
        if l.endswith(":") or l.startswith(".") or l.startswith(";"): continue
        ins.append((l, classify(l)))
    msgs = []
    V = lambda s: {x for x in s if x[0] in "va"}
    S = lambda s: {x for x in s if x[0] == "s"}
    for i, (l, c) in enumerate(ins):
        if c["mn"].startswith("v_pk_") and re.search(r"op_sel:\[\d,1", l): msgs.append(f"{name}: packed op takes src1 high word for low result (unsafe beside another wave's MFMA)\n    {l}")
        dist = 0; mdist = 0
        for j in range(i - 1, max(-1, i - 24), -1):
            pl, p = ins[j]
            need = 0; why = ""
            if p["kind"] == "valu":
                if c["kind"] == "mfma" and V(p["w"]) & c["r"]: need, why = 2, "VALU->MFMA src"
                if c.get("rdlane") and V(p["w"]) & c["r"]: need, why = max(need, 1), "VALU->readlane"
                if c.get("perml") and V(p["w"]) & c["r"]: need, why = max(need, 2), "VALU->permlane"
                if c["dpp"] and c["kind"] == "valu" and V(p["w"]) & c["r"]: need, why = max(need, 2), "VALU->DPP"
                if c["kind"] == "vmem" and S(p["w"]) & c["r"]: need, why = max(need, 5), "VALU sgpr->VMEM"
                if c["kind"] == "valu" and S(p["w"]) & c["r"]: need, why = max(need, 2), "VALU sgpr->VALU"
                if p.get("trans") and c["kind"] in ("valu",) and not c.get("trans") and V(p["w"]) & c["r"]: need, why = max(need, 1), "trans->VALU"
                if p.get("trans") and c["kind"] in ("ds","vmem","mfma") and V(p["w"]) & c["r"]: need, why = max(need, 2), "trans->mem(pad)"
                if p.get("dot") and c["kind"] in ("valu","mfma","ds","vmem") and V(p["w"]) & (c["r"] | c["w"]):
                    if not (c.get("dot") and c["mn"] == p["mn"] and not (V(p["w"]) & c["ab2"])): need, why = max(need, 3), "dot->use"
            if p["kind"] == "mfma":
                P = p["passes"]; t = {2: 5, 4: 8, 8: 12}[P]
                if c["kind"] == "mfma":
                    if p["w"] & c["ab"]: need, why = t, "MFMA D->MFMA A/B"
                    if p["w"] & c["srcC"]:
                        if p["w"] == c["srcC"] and P == c["passes"]: need, why = max(need, 2 if P == 2 else 0), "MFMA chain"
                        else: need, why = max(need, {2: 4, 4: 6, 8: 10}[P]), "MFMA D->SrcC overlap"
                    elif p["w"] & c["w"]: need, why = max(need, t), "MFMA WAW"
                elif c["kind"] in ("valu", "ds", "vmem") and p["w"] & (V(c["r"]) | V(c["w"])): need, why = t, "MFMA D->VALU/mem"
                if c["kind"] == "valu" and p["srcC"] & c["w"]: need, why = max(need, {2: 1, 4: 3, 8: 7}[P]), "MFMA srcC WAR"
            if p["kind"] == "salu" and ("s", 124) in p["w"] and c.get("ldsdma"): need, why = max(need, 1), "m0->ldsdma"
            if p["store_data"] and p["store_data"] & c["w"] and c["kind"] in ("valu", "mfma", "ds", "vmem"): need, why = max(need, 2), "store data WAR"
            if p["kind"] == "mfma" and p["passes"] == 8 and need <= mdist: need = 0
            mdist += 8 if (p["kind"] == "mfma" and p["passes"] == 8) else p.get("nop", 1)
            if need > dist: msgs.append(f"{name}: need {need} have {dist} [{why}]\n    {pl}\n    {l}")
            dist += p.get("nop", 1)
            if dist >= 20: break
    return msgs
```

```python
import sys, struct
from asmlib import *

KNAME = "gated_mix__ssm_conv_s5__mixer_channel_mlp__prompt_kernel"
def f2u(x): return struct.unpack("<I", struct.pack("<f", x))[0]
def fh(x): return "0x%08x" % f2u(x)

WS_HID = 0; HID_TT = 150*4096
WS_ST = 0xA00000; WS_SG = 0xA10000; WS_FL = 0xA40000; WS_WG = 0xA60000; WS_WC = 0xA61000; WS_USED = 0xA70000
WS_PROF = 0xB00000
SLOT = 36864; L_B = 16384; L_W1 = 24576; PIECE_U = 9216
L_E = 147456; L_CS = L_E + 4096; L_B1 = L_CS + 384; L_G2 = L_B1 + 384; L_H = L_G2 + 512; L_TR = L_H + 256
assert L_TR + 4*2560 <= 163840
OOB = 0x7ff00000
SPIN = 200000
S_WAVE, S_TT, S_J, S_U, S_TH, S_DN, S_CT0, S_NT, S_TAGG, S_TAGC = 3, 4, 5, 6, 7, 8, 9, 10, 11, 12
S_T0, S_T1, S_T2 = 13, 14, 15
P_X, P_LRE, P_LIM, P_BRE, P_BIM, P_CRE, P_CIM, P_LDT, P_DSK, P_BX, P_W1, P_B1, P_W2, P_B2, P_GW, P_OUT, P_DBG, P_WS = range(16, 52, 2)
R_X, R_B, R_W1, R_W2, R_CRE, R_CIM, R_WS, R_OUT = range(52, 84, 4)
S_A = 84

class VM:
    def __init__(self, a): self.a = a; self.q = []
    def op(self, text, tag=None): self.a(text); self.q.append(tag)
    def wait(self, tag):
        idx = [i for i, t in enumerate(self.q) if t == tag]
        if not idx: return
        n = len(self.q) - 1 - idx[-1]
        assert n <= 63, (tag, n)
        self.a(f"s_waitcnt vmcnt({n})"); self.q = self.q[idx[-1] + 1:]
    def drain(self): self.a("s_waitcnt vmcnt(0)"); self.q = []

def gen(prof=False):
    a = Asm()
    nst = [0]
    def stamp(vreg, idx):
        if not prof: return
        a(f"s_memtime s[100:101]\ns_waitcnt lgkmcnt(0)\nv_writelane_b32 v{vreg}, s100, {idx}")
    def srd(r, p, size):
        a(f"s_mov_b32 s{r}, s{p}\ns_mov_b32 s{r+1}, s{p+1}\ns_mov_b32 s{r+2}, {size}\ns_mov_b32 s{r+3}, 0x20000")
    def bf16r(d, s):
        a(f"v_cvt_pk_bf16_f32 v{d}, v{s}, v{s}\nv_and_b32 v{d}, 0xffff0000, v{d}")
    def csq(d, s, t):
        a(f"v_mul_f32 v{t}, v{s+1}, v{s+1}\nv_mul_f32 v{t+1}, v{s}, v{s+1}\nv_fma_f32 v{d}, v{s}, v{s}, -v{t}\nv_add_f32 v{d+1}, v{t+1}, v{t+1}")
    def horner(r, mu, e, rn):
        a(f"v_pk_fma_f32 {vr(rn,2)}, {vr(r,2)}, {vr(mu,2)}, {vr(e,2)} op_sel_hi:[1,0,1]")
        a(f"v_pk_fma_f32 {vr(rn,2)}, {vr(r,2)}, {vr(mu,2)}, {vr(rn,2)} op_sel:[1,1,0] op_sel_hi:[0,1,1] neg_lo:[0,1,0]")
    def params(vin, LAM, T, COEF=None):
        A_, B_, D_ = vin, vin + 1, vin + 2
        a(f"v_lshlrev_b32 v{D_}, 16, v{D_}\nv_lshlrev_b32 v{A_}, 16, v{A_}\nv_mul_f32 v{D_}, {fh(1.4426950408889634)}, v{D_}\nv_lshlrev_b32 v{B_}, 16, v{B_}")
        a(f"v_exp_f32 v{D_}, v{D_}\ns_nop 0")
        bf16r(D_, D_)
        a(f"v_mul_f32 v{T}, v{D_}, v{A_}\nv_mul_f32 v{T+1}, v{D_}, v{B_}")
        a(f"v_mul_f32 v{T}, {fh(1.4426950408889634)}, v{T}\nv_mul_f32 v{T+1}, 0.15915494, v{T+1}")
        a(f"v_exp_f32 v{T}, v{T}\nv_fract_f32 v{T+1}, v{T+1}\ns_nop 0\nv_cos_f32 v{T+2}, v{T+1}\nv_sin_f32 v{T+3}, v{T+1}\ns_nop 0")
        a(f"v_mul_f32 v{LAM}, v{T}, v{T+2}\nv_mul_f32 v{LAM+1}, v{T}, v{T+3}")
        if COEF is not None:
            a(f"v_mul_f32 v{T+4}, v{A_}, v{A_}\nv_add_f32 v{T}, -1.0, v{LAM}\nv_fmac_f32 v{T+4}, v{B_}, v{B_}")
            a(f"v_mul_f32 v{T+1}, v{T}, v{A_}\nv_rcp_f32 v{T+4}, v{T+4}\nv_mul_f32 v{T+2}, v{LAM+1}, v{A_}")
            a(f"v_fmac_f32 v{T+1}, v{LAM+1}, v{B_}\nv_fma_f32 v{T+2}, -v{T}, v{B_}, v{T+2}")
            a(f"v_mul_f32 v{COEF}, v{T+1}, v{T+4}\nv_mul_f32 v{COEF+1}, v{T+2}, v{T+4}")
    def tag_from(sd, v):
        a(f"v_readfirstlane_b32 s{sd}, v{v}\ns_nop 0\ns_mul_i32 s{sd}, s{sd}, 0x9e3779b1\ns_add_u32 s{sd}, s{sd}, 0x7f4a7c15")

    a(f"s_cmp_ge_u32 s2, 256\ns_cbranch_scc1 L_END")
    a("s_load_dwordx16 s[16:31], s[0:1], 0\ns_load_dwordx16 s[32:47], s[0:1], 64\ns_load_dwordx4 s[48:51], s[0:1], 128")
    a(f"v_lshrrev_b32 v1, 6, v0\nv_and_b32 v0, 63, v0\ns_and_b32 s{S_T0}, s2, 7\nv_readfirstlane_b32 s{S_WAVE}, v1")
    a(f"s_lshr_b32 s{S_T1}, s2, 3\ns_and_b32 s{S_J}, s{S_T1}, 15\ns_lshr_b32 s{S_T1}, s{S_T1}, 4\ns_lshl_b32 s{S_T0}, s{S_T0}, 1\ns_add_u32 s{S_TT}, s{S_T0}, s{S_T1}")
    a(f"s_and_b32 s{S_U}, s{S_WAVE}, 3\ns_lshr_b32 s{S_TH}, s{S_J}, 3\ns_and_b32 s{S_DN}, s{S_J}, 7")
    a(f"s_lshr_b32 s{S_T0}, s{S_J}, 2\ns_mul_i32 s{S_T0}, s{S_T0}, 11\ns_and_b32 s{S_T1}, s{S_J}, 3\ns_mul_i32 s{S_CT0}, s{S_T1}, 3\ns_add_u32 s{S_CT0}, s{S_CT0}, s{S_T0}")
    a(f"s_cmp_eq_u32 s{S_T1}, 3\ns_cselect_b32 s{S_NT}, 2, 3\ns_cmp_eq_u32 s{S_J}, 14\ns_cselect_b32 s{S_NT}, 2, s{S_NT}\ns_cmp_eq_u32 s{S_J}, 15\ns_cselect_b32 s{S_CT0}, 41, s{S_CT0}")
    a("v_and_b32 v1, 31, v0\nv_lshrrev_b32 v2, 5, v0")
    if prof:
        a("v_mov_b32 v3, 0\ns_memrealtime s[100:101]\ns_waitcnt lgkmcnt(0)\nv_writelane_b32 v3, s100, 63")
        stamp(3, 0)
    a("s_waitcnt lgkmcnt(0)")
    srd(R_WS, P_WS, WS_USED if not prof else 0x1000000); srd(R_X, P_X, 2048*1024)
    a(f"s_cmp_ge_u32 s{S_WAVE}, 4\ns_cbranch_scc1 L_LOADER")

    c0 = len(a.lines)
    URE, UIM, AM = 16, 32, [48, 64, 80]
    CS = [96, 100, 104]
    FS = [108, 132]
    VX, VA, VW = 156, 160, 164
    LAM, COEF, MU, ONES = 168, 170, 172, 174
    SM, SQ = 176, 178
    VL16, VFL, VHH, VE = 180, 181, 182, 183
    T = 184
    S_C, S_DELTA, S_K, S_HO, S_FLO = 84, 85, 86, 88, 89
    vm = VM(a)
    w = S_WAVE
    a(f"s_lshl_b32 s{S_T0}, s{S_TT}, 7\ns_add_u32 s{S_T0}, s{S_T0}, {WS_WG}\nv_mov_b32 v{T}, 0")
    vm.op(f"buffer_load_dword v{T+1}, v{T}, {sr(R_WS,4)}, s{S_T0} offen sc1", "wg")
    a(f"s_lshl_b32 s{S_T0}, s{S_J}, 6\nv_lshl_add_u32 v{T+2}, v1, 1, s{S_T0}")
    vm.op(f"global_load_ushort v{T+4}, v{T+2}, {sr(P_LRE,2)}", "par")
    vm.op(f"global_load_ushort v{T+5}, v{T+2}, {sr(P_LIM,2)}", "par")
    vm.op(f"global_load_ushort v{T+6}, v{T+2}, {sr(P_LDT,2)}", "par")
    a(f"s_sub_u32 s{S_T0}, s{S_NT}, 1\ns_min_u32 s{S_T0}, s{S_T0}, s{w}\ns_add_u32 s{S_T0}, s{S_T0}, s{S_CT0}\ns_lshl_b32 s{S_T0}, s{S_T0}, 6\nv_lshl_add_u32 v{T+3}, v1, 1, s{S_T0}")
    vm.op(f"global_load_ushort v{T+7}, v{T+3}, {sr(P_B1,2)}", "b1")
    srd(R_OUT, P_OUT, 2048*2048)
    a(f"v_bfe_u32 v{T+8}, v1, 1, 3\nv_lshlrev_b32 v{T+9}, 7, v1")
    a(f"v_bfe_u32 v{T+10}, v0, 2, 2\nv_lshl_add_u32 v{T+10}, v2, 3, v{T+10}\nv_mul_u32_u24 v{T+10}, 192, v{T+10}")
    a(f"v_bfe_u32 v{T+11}, v0, 4, 1\nv_lshl_add_u32 v{T+10}, v{T+11}, 5, v{T+10}\nv_and_b32 v{T+11}, 3, v0\nv_lshl_add_u32 v{T+10}, v{T+11}, 3, v{T+10}")
    a(f"s_lshl_b32 s{S_T2}, s{w}, 12")
    for s in range(4):
        a(f"s_add_u32 s{S_T0}, s{w}, {s}\ns_and_b32 s{S_T0}, s{S_T0}, 3\ns_lshl_b32 s{S_T1}, s{S_T0}, 1\ns_mul_i32 s{S_T0}, s{S_T0}, 3072\ns_add_u32 s{S_T0}, s{S_T0}, {L_W1}")
        a(f"v_add_u32 v{T+11}, s{S_T1}, v2\nv_xor_b32 v{T+11}, v{T+11}, v{T+8}\nv_lshl_add_u32 v{VA+s}, v{T+11}, 4, v{T+9}\nv_add_u32 v{VX+s}, s{S_T2}, v{VA+s}\nv_add_u32 v{VW+s}, s{S_T0}, v{T+10}")
    for r in list(range(16, 108)): a(f"v_mov_b32 v{r}, 0")
    a(f"v_mov_b32 v{ONES}, 0x3f803f80\nv_mov_b32 v{ONES+1}, 0x3f803f80")
    a(f"v_lshlrev_b32 v{VL16}, 4, v0\nv_lshlrev_b32 v{VHH}, 4, v2")
    a(f"v_mov_b32 v{VFL}, {OOB}\nv_cmp_eq_u32 vcc, 0, v0\ns_mov_b32 s{S_K}, {fh(-2.302208198*0.044715)}\ns_mov_b32 s{S_K+1}, {fh(-2.302208198)}\nv_cndmask_b32 v{VFL}, v{VFL}, v0, vcc")
    a(f"s_lshl_b32 s{S_T0}, s{w}, 10\nv_lshl_add_u32 v{VE}, v2, 9, s{S_T0}\nv_lshl_add_u32 v{VE}, v1, 4, v{VE}")
    a(f"s_mul_i32 s{S_HO}, s{S_TT}, {HID_TT}\ns_lshl_b32 s{S_T0}, s{w}, 10\ns_add_u32 s{S_HO}, s{S_HO}, s{S_T0}")
    a(f"s_lshr_b32 s{S_T0}, s{S_J}, 2\ns_lshl_b32 s{S_T1}, s{S_TT}, 2\ns_add_u32 s{S_T0}, s{S_T0}, s{S_T1}\ns_lshl_b32 s{S_T0}, s{S_T0}, 1\ns_lshr_b32 s{S_T1}, s{w}, 1\ns_add_u32 s{S_T0}, s{S_T0}, s{S_T1}\ns_lshl_b32 s{S_FLO}, s{S_T0}, 9")
    a(f"s_and_b32 s{S_T0}, s{S_J}, 3\ns_lshl_b32 s{S_T0}, s{S_T0}, 1\ns_and_b32 s{S_T1}, s{w}, 1\ns_add_u32 s{S_T0}, s{S_T0}, s{S_T1}\ns_lshl_b32 s{S_T0}, s{S_T0}, 2\ns_add_u32 s{S_FLO}, s{S_FLO}, s{S_T0}\ns_add_u32 s{S_FLO}, s{S_FLO}, {WS_FL}")
    vm.wait("par")
    tag_from(S_TAGG, T+1)
    params(T+4, LAM, T+8, COEF)
    csq(MU, LAM, T+8); csq(T+10, MU, T+8); csq(MU, T+10, T+8)
    vm.wait("b1")
    a(f"s_min_u32 s{S_T0}, s{w}, 2\ns_lshl_b32 s{S_T0}, s{S_T0}, 7\nv_lshl_add_u32 v{T}, v1, 2, s{S_T0}\nv_lshlrev_b32 v{T+7}, 16, v{T+7}\nv_mov_b32 v{T+1}, 0")
    a(f"s_cmp_eq_u32 s{w}, 3\ns_cbranch_scc1 L_C_NOB1")
    a(f"v_add_u32 v{T}, {L_CS}, v{T}\nds_write_b32 v{T}, v{T+7} offset:384\nds_write_b32 v{T}, v{T+1}")
    a.label("L_C_NOB1")
    a(f"s_mov_b32 s{S_C}, 0\ns_mov_b32 s91, {SLOT}\ns_waitcnt lgkmcnt(0)")
    stamp(3, 1)
    a("s_barrier")
    stamp(3, 2)

    def rd(set_, s, which):
        F = FS[set_]
        if which == 0: return f"ds_read_b128 {vr(F,4)}, v{VX+s}"
        if which == 1: return f"ds_read_b128 {vr(F+4,4)}, v{VA+s} offset:{L_B}"
        if which == 2: return f"ds_read_b128 {vr(F+8,4)}, v{VA+s} offset:{L_B+4096}"
        ft, q = divmod(which - 3, 2)
        return f"ds_read_b64_tr_b16 {vr(F+12+4*ft+2*q,2)}, v{VW+s} offset:{q*768+ft*64}"
    def mf(set_, i):
        F = FS[set_]
        if i == 0: return f"v_mfma_f32_32x32x16_bf16 {vr(URE,16)}, {vr(F,4)}, {vr(F+4,4)}, {vr(URE,16)}"
        if i == 1: return f"v_mfma_f32_32x32x16_bf16 {vr(UIM,16)}, {vr(F,4)}, {vr(F+8,4)}, {vr(UIM,16)}"
        return f"v_mfma_f32_32x32x16_bf16 {vr(AM[i-2],16)}, {vr(F+12+4*(i-2),4)}, {vr(F,4)}, {vr(AM[i-2],16)}"
    for k in range(9): a(rd(0, 0, k))
    loop0 = len(a.lines)
    a.label("L_C_LOOP")
    for s in range(3):
        cur, nxt = s & 1, (s + 1) & 1
        waits = [7, 8, 8, 8, 8]
        for i in range(5):
            a(f"s_waitcnt lgkmcnt({waits[i]})"); a(mf(cur, i))
            for k in range(2*i, min(2*i + 2, 9)): a(rd(nxt, s + 1, k))
        if s == 0:
            for hf in range(2):
                for ft in range(3):
                    a(f"v_mfma_f32_4x4x4_16b_bf16 {vr(CS[ft],4)}, {vr(ONES,2)}, {vr(FS[0]+12+4*ft+2*hf,2)}, {vr(CS[ft],4)}")
    a("s_waitcnt lgkmcnt(7)"); a(mf(1, 0))
    a(f"s_and_b32 s{S_T0}, s{S_C}, 3\ns_cmp_eq_u32 s{S_T0}, 3\ns_cselect_b32 s{S_DELTA}, {(-3*SLOT) & 0xffffffff}, s91")
    a("s_waitcnt lgkmcnt(6)"); a(mf(1, 1))
    a(f"s_add_u32 s{S_C}, s{S_C}, 1\ns_cmp_eq_u32 s{S_C}, 8\ns_cbranch_scc1 L_C_TAIL")
    a(f"v_add_u32 v{VX}, s{S_DELTA}, v{VX}\nv_add_u32 v{VA}, s{S_DELTA}, v{VA}\nv_add_u32 v{VW}, s{S_DELTA}, v{VW}")
    a("s_waitcnt lgkmcnt(0)\ns_barrier")
    for i in range(2, 5):
        a(mf(1, i))
        for k in range(3*(i-2), 3*(i-2) + 3): a(rd(0, 0, k))
        s = i - 1
        a(f"v_add_u32 v{VX+s}, s{S_DELTA}, v{VX+s}\nv_add_u32 v{VA+s}, s{S_DELTA}, v{VA+s}\nv_add_u32 v{VW+s}, s{S_DELTA}, v{VW+s}")
    a("s_branch L_C_LOOP")
    loop1 = len(a.lines)
    a.label("L_C_TAIL")
    a("s_waitcnt lgkmcnt(0)")
    for i in range(2, 5): a(mf(1, i))
    stamp(3, 3)
    a(f"v_bfe_u32 v{T}, v1, 2, 1\nv_lshlrev_b32 v{T}, 4, v{T}\nv_and_b32 v{T+1}, 1, v1\nv_lshl_add_u32 v{T}, v{T+1}, 3, v{T}")
    a(f"v_lshrrev_b32 v{T+1}, 3, v1\nv_lshl_add_u32 v{T}, v{T+1}, 1, v{T}\nv_bfe_u32 v{T+1}, v1, 1, 1\nv_add_u32 v{T}, v{T}, v{T+1}\nv_lshlrev_b32 v{T}, 4, v{T}")
    a(f"s_lshl_b32 s{S_T0}, s{S_TT}, 2\ns_add_u32 s{S_T0}, s{S_T0}, s{w}\ns_lshl_b32 s{S_T0}, s{S_T0}, 9\ns_add_u32 s90, s{S_T0}, {WS_ST}")
    vm.op(f"buffer_load_dwordx4 {vr(T+4,4)}, v{T}, {sr(R_WS,4)}, s90 offen sc1", "st")
    a(f"v_lshlrev_b32 v{T+1}, 2, v1\nv_add_u32 v{T+1}, {L_CS}, v{T+1}")
    for ft in range(3): a(f"ds_add_f32 v{T+1}, v{CS[ft]} offset:{ft*128}")
    SA, SB = T + 8, T + 12
    cur_re, cur_im = URE, UIM
    dst = SA
    for n in range(1, 8):
        a(f"v_pk_fma_f32 {vr(dst,2)}, {vr(cur_re,2)}, {vr(LAM,2)}, {vr(URE+2*n,2)} op_sel_hi:[1,0,1]")
        a(f"v_pk_fma_f32 {vr(dst+2,2)}, {vr(cur_im,2)}, {vr(LAM,2)}, {vr(UIM+2*n,2)} op_sel_hi:[1,0,1]")
        a(f"v_pk_fma_f32 {vr(dst,2)}, {vr(cur_im,2)}, {vr(LAM,2)}, {vr(dst,2)} op_sel:[0,1,0] op_sel_hi:[1,1,1] neg_lo:[0,1,0] neg_hi:[0,1,0]")
        a(f"v_pk_fma_f32 {vr(dst+2,2)}, {vr(cur_re,2)}, {vr(LAM,2)}, {vr(dst+2,2)} op_sel:[0,1,0] op_sel_hi:[1,1,1]")
        cur_re, cur_im = dst, dst + 2
        dst = SB if dst == SA else SA
    a(f"v_swap_b32 v{cur_re+1}, v{cur_re+2}\nv_add_u32 v{T+1}, {L_E}, v{VE}\nds_write_b128 v{T+1}, {vr(cur_re,4)}")
    a("s_waitcnt lgkmcnt(0)")
    stamp(3, 4)
    a("s_barrier")
    stamp(3, 5)
    a(f"s_mov_b32 s{S_T2}, {SPIN}")
    a.label("L_C_ST")
    a(f"s_waitcnt vmcnt(0)\nv_cmp_ne_u32 vcc, s{S_TAGG}, v{T+7}\ns_sub_u32 s{S_T2}, s{S_T2}, 1\ns_cmp_eq_u32 s{S_T2}, 0\ns_cbranch_scc1 L_C_STOK\ns_cbranch_vccz L_C_STOK")
    a(f"buffer_load_dwordx4 {vr(T+4,4)}, v{T}, {sr(R_WS,4)}, s90 offen sc1\ns_branch L_C_ST")
    a.label("L_C_STOK")
    vm.q = []
    a(f"v_sub_f32 v{SQ}, 1.0, v{T+6}\nv_sub_f32 v{SM}, 0, v{T+4}\nv_mov_b32 v{SM+1}, v{T+5}")
    bf16r(SQ, SQ)
    a(f"v_add_f32 v{SQ+1}, v{T+6}, v{T+6}\nv_max_f32 v{SQ}, {fh(1e-30)}, v{SQ}\ns_lshl_b32 s{S_T0}, s{w}, 7\nv_rcp_f32 v{SQ}, v{SQ}")
    a(f"s_add_u32 s{S_T0}, s{S_T0}, {L_G2}\nv_lshl_add_u32 v{T}, v1, 2, s{S_T0}\nds_write_b32 v{T}, v{SQ+1}")
    TC, TB, O = T + 8, T + 24, T + 40
    a(f"v_add_u32 v{T+1}, {L_CS}, v{VHH}")
    def gelu_reads(ft):
        for jj in range(4): a(f"ds_read_b128 {vr(TC+4*jj,4)}, v{T+1} offset:{ft*128+jj*32}")
        for jj in range(4): a(f"ds_read_b128 {vr(TB+4*jj,4)}, v{T+1} offset:{384+ft*128+jj*32}")
    def gelu(ft):
        A = AM[ft]
        a("s_waitcnt lgkmcnt(4)")
        for p in range(8): a(f"v_pk_fma_f32 {vr(A+2*p,2)}, {vr(TC+2*p,2)}, {vr(SM,2)}, {vr(A+2*p,2)} op_sel_hi:[1,0,1]")
        a("s_waitcnt lgkmcnt(0)")
        for p in range(8): a(f"v_pk_fma_f32 {vr(A+2*p,2)}, {vr(A+2*p,2)}, {vr(SM,2)}, {vr(TB+2*p,2)} op_sel:[0,1,0] op_sel_hi:[1,1,1]")
        X = T + 48
        for p in range(8): a(f"v_pk_mul_f32 {vr(X+2*p,2)}, {vr(A+2*p,2)}, {vr(A+2*p,2)}")
        if ft < 2: gelu_reads(ft + 1)
        for p in range(8): a(f"v_pk_fma_f32 {vr(X+2*p,2)}, {vr(X+2*p,2)}, {sr(S_K,2)}, {sr(S_K,2)} op_sel:[0,0,1] op_sel_hi:[1,0,1]")
        for p in range(8): a(f"v_pk_mul_f32 {vr(X+2*p,2)}, {vr(X+2*p,2)}, {vr(A+2*p,2)}")
        for r in range(16): a(f"v_exp_f32 v{X+r}, v{X+r}")
        for p in range(8): a(f"v_pk_fma_f32 {vr(X+2*p,2)}, {vr(X+2*p,2)}, {vr(SQ,2)}, {vr(SQ,2)} op_sel_hi:[1,0,0]")
        for r in range(16): a(f"v_rcp_f32 v{X+r}, v{X+r}")
        for p in range(8): a(f"v_pk_mul_f32 {vr(X+2*p,2)}, {vr(X+2*p,2)}, {vr(A+2*p,2)}")
        a(f"s_add_u32 s{S_T0}, s{S_CT0}, {ft}\ns_lshl_b32 s{S_T0}, s{S_T0}, 13\ns_add_u32 s{S_T0}, s{S_T0}, s{S_HO}\ns_add_u32 s{S_T1}, s{S_T0}, 4096")
        for p in range(8): a(f"v_cvt_pk_bf16_f32 v{A+p}, v{X+2*p}, v{X+2*p+1}")
        vm.op(f"buffer_store_dwordx4 {vr(A,4)}, v{VL16}, {sr(R_WS,4)}, s{S_T0} offen sc1", f"st{ft}")
        vm.op(f"buffer_store_dwordx4 {vr(A+4,4)}, v{VL16}, {sr(R_WS,4)}, s{S_T1} offen sc1", f"st{ft}")
    def flag(stage):
        vm.op(f"buffer_store_dword v{T+2}, v{VFL}, {sr(R_WS,4)}, s{S_FLO} offen offset:{stage*128} sc1", "fl")
    a(f"v_mov_b32 v{T+2}, s{S_TAGG}")
    gelu_reads(0)
    gelu(0)
    stamp(3, 6)
    gelu(1)
    vm.wait("st0"); flag(0)
    stamp(3, 7)
    a(f"s_cmp_eq_u32 s{S_NT}, 2\ns_cbranch_scc1 L_C_NOT2")
    q_save = list(vm.q)
    gelu(2)
    vm.wait("st1"); flag(1)
    a("s_branch L_C_T2DONE")
    a.label("L_C_NOT2")
    q_a = list(vm.q); vm.q = q_save
    a("s_waitcnt lgkmcnt(0)")
    vm.wait("st1"); flag(1)
    a.label("L_C_T2DONE")
    vm.q = q_a
    stamp(3, 8)
    a("s_waitcnt lgkmcnt(0)\ns_barrier")
    stamp(3, 9)
    RA, RB, EE, G2 = T + 4, T + 6, T + 8, T + 24
    a(f"v_lshlrev_b32 v{T}, 3, v1\nv_add_u32 v{T}, {L_H}, v{T}\nds_read_b64 {vr(RA,2)}, v{T}")
    a(f"v_lshlrev_b32 v{T}, 4, v1\nv_add_u32 v{T}, {L_E}, v{T}\ns_mov_b32 s{S_T2}, s{w}")
    a(f"s_lshl_b32 s{S_T0}, s{w}, 7\ns_add_u32 s{S_T0}, s{S_T0}, {L_G2}\nv_add_u32 v{T+1}, s{S_T0}, v{VHH}")
    for jj in range(4): a(f"ds_read_b128 {vr(G2+4*jj,4)}, v{T+1} offset:{jj*32}")
    a.label("L_C_HL")
    a(f"ds_read_b128 {vr(EE,4)}, v{T}\nds_read_b128 {vr(EE+4,4)}, v{T} offset:512\nv_add_u32 v{T}, 1024, v{T}\ns_cmp_eq_u32 s{S_T2}, 0\ns_waitcnt lgkmcnt(0)\ns_cbranch_scc1 L_C_HD")
    horner(RA, MU, EE, RB); horner(RB, MU, EE+2, RA); horner(RA, MU, EE+4, RB); horner(RB, MU, EE+6, RA)
    a(f"s_sub_u32 s{S_T2}, s{S_T2}, 1\ns_branch L_C_HL")
    a.label("L_C_HD")
    R2, R3, CC = T + 16, T + 18, T + 20
    horner(RA, MU, EE, RB); horner(RB, MU, EE+2, R2); horner(R2, MU, EE+4, R3)
    a(f"v_cmp_eq_u32 vcc, 1, v2")
    vm.wait("st2"); flag(2)
    a(f"v_cndmask_b32 v{CC}, v{RA}, v{R2}, vcc\nv_cndmask_b32 v{CC+1}, v{RB}, v{R3}, vcc\nv_cndmask_b32 v{CC+2}, v{RA+1}, v{R2+1}, vcc\nv_cndmask_b32 v{CC+3}, v{RB+1}, v{R3+1}, vcc")
    PRE, PIM, OR, OI = T + 40, T + 48, T + 56, T + 58
    cur_re, cur_im = CC, CC + 2
    def post(n):
        u, v = URE + 2*n, UIM + 2*n
        a(f"v_pk_mul_f32 {vr(OR,2)}, {vr(u,2)}, {vr(COEF,2)} op_sel_hi:[1,0]")
        a(f"v_pk_mul_f32 {vr(OI,2)}, {vr(v,2)}, {vr(COEF,2)} op_sel_hi:[1,0] neg_lo:[0,1] neg_hi:[0,1]")
        a(f"v_pk_fma_f32 {vr(OR,2)}, {vr(v,2)}, {vr(COEF,2)}, {vr(OR,2)} op_sel:[0,1,0] op_sel_hi:[1,1,1] neg_lo:[0,1,0] neg_hi:[0,1,0]")
        a(f"v_pk_fma_f32 {vr(OI,2)}, {vr(u,2)}, {vr(COEF,2)}, {vr(OI,2)} op_sel:[0,1,0] op_sel_hi:[1,1,1] neg_lo:[0,1,0] neg_hi:[0,1,0]")
        a(f"v_pk_mul_f32 {vr(OR,2)}, {vr(OR,2)}, {vr(G2+2*n,2)}\nv_pk_mul_f32 {vr(OI,2)}, {vr(OI,2)}, {vr(G2+2*n,2)}")
        a(f"v_cvt_pk_bf16_f32 v{PRE+n}, v{OR}, v{OR+1}\nv_cvt_pk_bf16_f32 v{PIM+n}, v{OI}, v{OI+1}")
    for n in range(8):
        u, v = URE + 2*n, UIM + 2*n
        a(f"v_pk_fma_f32 {vr(u,2)}, {vr(cur_re,2)}, {vr(LAM,2)}, {vr(u,2)} op_sel_hi:[1,0,1]")
        a(f"v_pk_fma_f32 {vr(v,2)}, {vr(cur_im,2)}, {vr(LAM,2)}, {vr(v,2)} op_sel_hi:[1,0,1]")
        a(f"v_pk_fma_f32 {vr(u,2)}, {vr(cur_im,2)}, {vr(LAM,2)}, {vr(u,2)} op_sel:[0,1,0] op_sel_hi:[1,1,1] neg_lo:[0,1,0] neg_hi:[0,1,0]")
        a(f"v_pk_fma_f32 {vr(v,2)}, {vr(cur_re,2)}, {vr(LAM,2)}, {vr(v,2)} op_sel:[0,1,0] op_sel_hi:[1,1,1]")
        cur_re, cur_im = u, v
        if n > 0: post(n - 1)
    post(7)
    a(f"s_mul_i32 s{S_T0}, s{w}, 2560\ns_add_u32 s{S_T0}, s{S_T0}, {L_TR}\nv_mul_u32_u24 v{T}, 80, v1\nv_lshl_add_u32 v{T}, v2, 5, v{T}\nv_add_u32 v{T}, s{S_T0}, v{T}")
    a(f"v_bfe_u32 v{T+1}, v0, 2, 2\nv_lshl_add_u32 v{T+1}, v2, 3, v{T+1}\nv_mul_u32_u24 v{T+1}, 80, v{T+1}\nv_and_b32 v{T+3}, 1, v0\nv_lshl_add_u32 v{T+1}, v{T+3}, 5, v{T+1}")
    a(f"v_bfe_u32 v{T+3}, v0, 4, 1\nv_lshl_add_u32 v{T+1}, v{T+3}, 4, v{T+1}\nv_bfe_u32 v{T+3}, v0, 1, 1\nv_lshl_add_u32 v{T+1}, v{T+3}, 3, v{T+1}\nv_add_u32 v{T+1}, s{S_T0}, v{T+1}")
    HF = 16
    for part, PK in enumerate((PRE, PIM)):
        a(f"ds_write_b128 v{T}, {vr(PK,4)}\nds_write_b128 v{T}, {vr(PK+4,4)} offset:16")
        for sp in range(2):
            for q in range(2):
                a(f"ds_read_b64_tr_b16 {vr(HF+8*part+4*sp+2*q,2)}, v{T+1} offset:{(16*sp+4*q)*80}")
    a(f"s_lshl_b32 s{S_T0}, s{S_J}, 14\ns_add_u32 s{S_T0}, s{S_T0}, s{S_HO}\ns_add_u32 s{S_T0}, s{S_T0}, {86*4096}")
    for k in range(4):
        a(f"s_waitcnt lgkmcnt({[6,4,2,0][k] if k>=2 else [8,6][k]})")
        vm.op(f"buffer_store_dwordx4 {vr(HF+4*k,4)}, v{VL16}, {sr(R_WS,4)}, s{S_T0} offen sc1", "st3")
        if k < 3: a(f"s_add_u32 s{S_T0}, s{S_T0}, 4096")
    stamp(3, 10)
    XV, DK, B2, GV, TM = 32, 40, 42, 44, 48
    VROW, VRD = T, T + 1
    a(f"v_lshrrev_b32 v{T+3}, 4, v0\nv_and_b32 v{T+4}, 1, v{T+3}\nv_lshlrev_b32 v{T+4}, 3, v{T+4}\nv_lshrrev_b32 v{T+5}, 1, v{T+3}\nv_add_u32 v{VROW}, v{T+4}, v{T+5}\nv_and_b32 v{T+6}, 15, v0")
    a(f"s_lshl_b32 s90, s{S_TT}, 7\ns_lshl_b32 s{S_T0}, s{S_TH}, 6\ns_add_u32 s90, s90, s{S_T0}\ns_lshr_b32 s{S_T0}, s{w}, 1\ns_lshl_b32 s{S_T0}, s{S_T0}, 5\ns_add_u32 s90, s90, s{S_T0}\ns_and_b32 s{S_T0}, s{w}, 1\ns_lshl_b32 s{S_T0}, s{S_T0}, 2\ns_add_u32 s90, s90, s{S_T0}")
    a(f"s_lshl_b32 s91, s90, 10\ns_lshl_b32 s{S_T0}, s{S_DN}, 7\ns_add_u32 s91, s91, s{S_T0}\nv_lshlrev_b32 v{T+4}, 10, v{VROW}\nv_lshl_add_u32 v{T+4}, v{T+6}, 3, v{T+4}\nv_lshl_add_u32 v{T+5}, v{T+6}, 3, s{S_T0}")
    roff = [16*(i & 1) + 2*(i >> 1) for i in range(4)]
    for i in range(4):
        a(f"s_add_u32 s{S_T1}, s91, {roff[i]*1024}")
        vm.op(f"buffer_load_dwordx2 {vr(XV+2*i,2)}, v{T+4}, {sr(R_X,4)}, s{S_T1} offen", "ep")
    vm.op(f"global_load_dwordx2 {vr(DK,2)}, v{T+5}, {sr(P_DSK,2)}", "ep")
    vm.op(f"global_load_dwordx2 {vr(B2,2)}, v{T+5}, {sr(P_B2,2)}", "ep")
    a(f"s_lshl_b32 s{S_T0}, s{S_TH}, 2\ns_add_u32 s{S_T0}, s{S_T0}, s{w}\ns_lshl_b32 s{S_T0}, s{S_T0}, 6\ns_add_u32 s{S_T0}, s{S_T0}, {L_G2}\nv_lshl_add_u32 v{T+7}, v{T+3}, 2, s{S_T0}")
    for i in range(4): a(f"ds_read_b32 v{GV+i}, v{T+7} offset:{i*16}")
    vm.wait("st3"); flag(3)
    stamp(3, 11)
    a(f"s_lshr_b32 s{S_T0}, s{w}, 1\ns_mul_i32 s{S_T0}, s{S_T0}, {SLOT}\ns_and_b32 s{S_T1}, s{w}, 1\ns_mul_i32 s{S_T1}, s{S_T1}, {16*272}\ns_add_u32 s{S_T0}, s{S_T0}, s{S_T1}")
    a(f"v_mul_u32_u24 v{VRD}, 272, v{T+3}\nv_lshl_add_u32 v{VRD}, v{T+6}, 4, v{VRD}\nv_add_u32 v{VRD}, s{S_T0}, v{VRD}")
    a(f"v_lshlrev_b32 v{VROW}, 11, v{VROW}\nv_lshl_add_u32 v{VROW}, v{T+6}, 4, v{VROW}\ns_lshl_b32 s90, s90, 11\ns_lshl_b32 s{S_T0}, s{S_DN}, 8\ns_add_u32 s90, s90, s{S_T0}")
    vm.wait("ep")
    a("s_waitcnt lgkmcnt(0)")
    DF, BF, XF = T + 8, T + 12, T + 16
    for k in range(2):
        a(f"v_lshlrev_b32 v{DF+2*k}, 16, v{DK+k}\nv_and_b32 v{DF+2*k+1}, 0xffff0000, v{DK+k}\nv_lshlrev_b32 v{BF+2*k}, 16, v{B2+k}\nv_and_b32 v{BF+2*k+1}, 0xffff0000, v{B2+k}")
    for i in range(4):
        g, om = T + 20, T + 21
        a(f"v_mul_f32 v{g}, 0.5, v{GV+i}\nv_sub_f32 v{om}, 1.0, v{g}")
        bf16r(om, om)
        for k in range(2):
            a(f"v_lshlrev_b32 v{XF+2*k}, 16, v{XV+2*i+k}\nv_and_b32 v{XF+2*k+1}, 0xffff0000, v{XV+2*i+k}")
            a(f"v_pk_mul_f32 {vr(XF+2*k,2)}, {vr(XF+2*k,2)}, {vr(DF+2*k,2)}\nv_cvt_pk_bf16_f32 v{T+22}, v{XF+2*k}, v{XF+2*k+1}")
            a(f"v_lshlrev_b32 v{XF+2*k}, 16, v{T+22}\nv_and_b32 v{XF+2*k+1}, 0xffff0000, v{T+22}")
            a(f"v_pk_mul_f32 {vr(TM+4*i+2*k,2)}, {vr(BF+2*k,2)}, {vr(g,2)} op_sel:[0,1] op_sel_hi:[1,1]")
            a(f"v_pk_fma_f32 {vr(TM+4*i+2*k,2)}, {vr(XF+2*k,2)}, {vr(g,2)}, {vr(TM+4*i+2*k,2)} op_sel_hi:[1,0,1]")
    stamp(3, 12)
    a("s_barrier")
    stamp(3, 13)
    PT = 64
    for i in range(4):
        for u in range(4): a(f"ds_read_b128 {vr(PT+16*i+4*u,4)}, v{VRD} offset:{u*PIECE_U+i*4*272}")
    for i in range(4):
        a(f"s_waitcnt lgkmcnt({12-4*i})")
        for u in range(4):
            for k in range(2): a(f"v_pk_add_f32 {vr(TM+4*i+2*k,2)}, {vr(TM+4*i+2*k,2)}, {vr(PT+16*i+4*u+2*k,2)}")
        a(f"s_add_u32 s{S_T1}, s90, {roff[i]*2048}")
        vm.op(f"buffer_store_dwordx4 {vr(TM+4*i,4)}, v{VROW}, {sr(R_OUT,4)}, s{S_T1} offen", "out")
    a(f"s_or_b32 s{S_T0}, s{S_J}, s{w}\ns_cmp_lg_u32 s{S_T0}, 0\ns_cbranch_scc1 L_C_DONE\ns_lshl_b32 s{S_T0}, s{S_TT}, 7\ns_add_u32 s{S_T0}, s{S_T0}, {WS_WG}")
    a(f"buffer_store_dword v{T+2}, v{VFL}, {sr(R_WS,4)}, s{S_T0} offen sc1")
    a.label("L_C_DONE")
    if prof:
        a("s_waitcnt vmcnt(0)"); stamp(3, 14)
        a(f"s_lshl_b32 s{S_T0}, s2, 3\ns_add_u32 s{S_T0}, s{S_T0}, s{S_WAVE}\ns_lshl_b32 s{S_T0}, s{S_T0}, 8\ns_add_u32 s{S_T0}, s{S_T0}, {WS_PROF}\nv_lshlrev_b32 v4, 2, v0\nbuffer_store_dword v3, v4, {sr(R_WS,4)}, s{S_T0} offen")
    a("s_endpgm")
    c1 = len(a.lines)

    a.label("L_LOADER")
    vm = VM(a)
    u = S_U
    DX, DB, DW, DW2 = 4, 6, 8, 11
    VT, VC, VL16, VPOLL, VRED = 12, 16, 24, 25, 26
    MUL, NU, NU8 = 28, 30, 32
    WF = [48, 56]; ACC = 64; HB = [128, 192]
    S_XO, S_BO, S_WO, S_M0X, S_M0B, S_M0W = 84, 85, 86, 87, 88, 89
    T = 128
    srd(R_W1, P_W1, 512*2752)
    a(f"s_cmp_ge_u32 s{u}, 2\ns_cselect_b32 s{R_B}, s{P_BIM}, s{P_BRE}\ns_cselect_b32 s{R_B+1}, s{P_BIM+1}, s{P_BRE+1}\ns_mov_b32 s{R_B+2}, {512*1024}\ns_mov_b32 s{R_B+3}, 0x20000")
    a(f"s_lshl_b32 s{S_T0}, s{S_TT}, 7\ns_add_u32 s{S_T0}, s{S_T0}, {WS_WG}\nv_mov_b32 v{T}, 0\ns_lshl_b32 s{S_T1}, s{S_J}, 7\ns_add_u32 s{S_T1}, s{S_T1}, {WS_WC}")
    vm.op(f"buffer_load_dword v{T+1}, v{T}, {sr(R_WS,4)}, s{S_T0} offen sc1", "wg")
    vm.op(f"buffer_load_dword v{T+2}, v{T}, {sr(R_WS,4)}, s{S_T1} offen sc1", "wg")
    X0, G0 = T + 8, T + 16
    a(f"s_lshl_b32 s{S_T0}, s{S_TT}, 4\ns_add_u32 s{S_T0}, s{S_T0}, s{S_J}\ns_lshl_b32 s{S_T0}, s{S_T0}, 2\ns_add_u32 s{S_T0}, s{S_T0}, s{u}\ns_lshl_b32 s90, s{S_T0}, 1\ns_lshl_b32 s{S_T0}, s{S_T0}, 11")
    a(f"v_lshlrev_b32 v{T+3}, 4, v1\nv_lshl_add_u32 v{T+4}, v2, 10, v{T+3}")
    vm.op(f"buffer_load_dwordx4 {vr(X0,4)}, v{T+4}, {sr(R_X,4)}, s{S_T0} offen", "st")
    vm.op(f"buffer_load_dwordx4 {vr(X0+4,4)}, v{T+4}, {sr(R_X,4)}, s{S_T0} offen offset:512", "st")
    vm.op(f"global_load_dwordx4 {vr(G0,4)}, v{T+3}, {sr(P_GW,2)}", "st")
    vm.op(f"global_load_dwordx4 {vr(G0+4,4)}, v{T+3}, {sr(P_GW,2)} offset:512", "st")
    t_, p_ = T + 5, T + 6
    a(f"v_lshrrev_b32 v{t_}, 3, v0\nv_and_b32 v{p_}, 7, v0\nv_lshrrev_b32 v{T+7}, 1, v{t_}\nv_xor_b32 v{T+7}, v{T+7}, v{p_}\nv_lshlrev_b32 v{T+7}, 4, v{T+7}")
    a(f"v_lshl_add_u32 v{DB}, v{t_}, 10, v{T+7}\nv_xor_b32 v{DB+1}, 64, v{DB}")
    a(f"v_lshrrev_b32 v{DX}, 2, v{t_}\nv_lshlrev_b32 v{DX}, 4, v{DX}\nv_and_b32 v{DX+1}, 1, v{t_}\nv_lshl_add_u32 v{DX}, v{DX+1}, 3, v{DX}\nv_bfe_u32 v{DX+1}, v{t_}, 1, 1\nv_add_u32 v{DX}, v{DX}, v{DX+1}")
    a(f"v_lshl_add_u32 v{DX}, v{DX}, 10, v{T+7}\nv_lshlrev_b32 v{DW2}, 2, v{DX+1}\nv_xor_b32 v{DX+1}, 64, v{DX}")
    a(f"v_xor_b32 v{DW2}, v{DW2}, v{p_}\nv_lshlrev_b32 v{DW2}, 4, v{DW2}\nv_lshl_add_u32 v{DW2}, v{t_}, 10, v{DW2}")
    a(f"s_cmp_eq_u32 s{S_NT}, 2\ns_cselect_b32 s{S_T1}, 7, 11\ns_movk_i32 s{S_T2}, 2752")
    for n in range(3):
        a(f"v_add_u32 v{t_}, {64*n}, v0\nv_mul_u32_u24 v{p_}, 171, v{t_}\nv_lshrrev_b32 v{p_}, 11, v{p_}\nv_mul_u32_u24 v{T+7}, 12, v{p_}\nv_sub_u32 v{t_}, v{t_}, v{T+7}")
        a(f"v_cmp_lt_u32 vcc, s{S_T1}, v{t_}\nv_subrev_u32 v{T+7}, 4, v{t_}\nv_mul_u32_u24 v{p_}, s{S_T2}, v{p_}\nv_cndmask_b32 v{t_}, v{t_}, v{T+7}, vcc\nv_lshl_add_u32 v{DW+n}, v{t_}, 4, v{p_}")
    a(f"s_lshl_b32 s{S_XO}, s{S_TT}, 2\ns_add_u32 s{S_XO}, s{S_XO}, s{u}\ns_lshl_b32 s{S_XO}, s{S_XO}, 15")
    a(f"s_lshl_b32 s{S_BO}, s{S_J}, 1\ns_and_b32 s{S_T0}, s{u}, 1\ns_add_u32 s{S_BO}, s{S_BO}, s{S_T0}\ns_lshl_b32 s{S_BO}, s{S_BO}, 14")
    a(f"s_mul_i32 s{S_WO}, s{u}, {16*2752}\ns_lshl_b32 s{S_T0}, s{S_CT0}, 6\ns_add_u32 s{S_WO}, s{S_WO}, s{S_T0}")
    a(f"s_lshl_b32 s{S_M0X}, s{u}, 12\ns_lshl_b32 s{S_M0B}, s{u}, 11\ns_mul_i32 s{S_M0W}, s{u}, 3072")
    def dma(m0base, m0imm, sob, soimm, vaddr, rs, tag):
        a(f"s_add_u32 m0, s{m0base}, {m0imm}\ns_add_u32 s{S_T0}, s{sob}, {soimm}")
        vm.op(f"buffer_load_dwordx4 v{vaddr}, {sr(rs,4)}, s{S_T0} offen lds", tag)
    def chunk(c):
        sl = (c & 3) * SLOT
        for i in range(4): dma(S_M0X, sl + 1024*i, S_XO, 2048*i + 128*c, DX + (i & 1), R_X, f"c{c}")
        for i in range(2): dma(S_M0B, sl + L_B + 1024*i, S_BO, 8192*i + 128*c, DB + i, R_B, f"c{c}")
        for n in range(3): dma(S_M0W, sl + L_W1 + 1024*n, S_WO, 64*2752*c, DW + n, R_W1, f"c{c}")
    chunk(0)
    a(f"s_lshl_b32 s{S_T1}, s{S_J}, 6\nv_lshl_add_u32 v{T+3}, v1, 1, s{S_T1}")
    vm.op(f"global_load_ushort v{40}, v{T+3}, {sr(P_LRE,2)}", "par")
    vm.op(f"global_load_ushort v{41}, v{T+3}, {sr(P_LIM,2)}", "par")
    vm.op(f"global_load_ushort v{42}, v{T+3}, {sr(P_LDT,2)}", "par")
    chunk(1); chunk(2); chunk(3)
    stamp(3, 1)
    vm.wait("st")
    stamp(3, 2)
    tag_from(S_TAGG, T+1); tag_from(S_TAGC, T+2)
    F, GF, PB = T + 24, T + 40, T + 56
    for i in range(8):
        a(f"v_lshlrev_b32 v{F+2*i}, 16, v{X0+i}\nv_and_b32 v{F+2*i+1}, 0xffff0000, v{X0+i}\nv_lshlrev_b32 v{GF+2*i}, 16, v{G0+i}\nv_and_b32 v{GF+2*i+1}, 0xffff0000, v{G0+i}")
    for i in range(8): a(f"v_pk_mul_f32 {vr(GF+2*i,2)}, {vr(GF+2*i,2)}, {vr(F+2*i,2)}")
    for i in range(8): a(f"v_cvt_pk_bf16_f32 v{PB+i}, v{GF+2*i}, v{GF+2*i+1}")
    s1, s2, s3, on = T + 4, T + 5, T + 6, T + 7
    a(f"v_mov_b32 v{on}, 0x3f803f80\nv_mov_b32 v{s1}, 0\nv_mov_b32 v{s2}, 0")
    for i in range(8): a(f"v_dot2_f32_bf16 v{s1}, v{X0+i}, v{on}, v{s1}\nv_dot2_f32_bf16 v{s2}, v{PB+i}, v{on}, v{s2}")
    def red32(rs, tmp):
        for m in ("quad_perm:[1,0,3,2]", "quad_perm:[2,3,0,1]", "row_half_mirror", "row_mirror"):
            a("s_nop 1")
            for r in rs: a(f"v_add_f32_dpp v{r}, v{r}, v{r} {m} row_mask:0xf bank_mask:0xf")
        for k, r in enumerate(rs): a(f"v_mov_b32 v{tmp+k}, v{r}")
        a("s_nop 1")
        for k, r in enumerate(rs): a(f"v_permlane16_swap_b32 v{r}, v{tmp+k}")
        a("s_nop 0")
        for k, r in enumerate(rs): a(f"v_add_f32 v{r}, v{r}, v{tmp+k}")
    a("s_nop 1")
    red32([s1, s2], PB)
    a(f"v_mul_f32 v{s1}, {fh(1/512)}, v{s1}\nv_mov_b32 v{PB}, 0\nv_mov_b32 v{PB+1}, 0")
    for i in range(8): a(f"v_pk_add_f32 {vr(F+2*i,2)}, {vr(F+2*i,2)}, {vr(s1,2)} op_sel_hi:[1,0] neg_lo:[0,1] neg_hi:[0,1]")
    for i in range(8): a(f"v_pk_fma_f32 {vr(PB,2)}, {vr(F+2*i,2)}, {vr(F+2*i,2)}, {vr(PB,2)}")
    a(f"v_add_f32 v{s3}, v{PB}, v{PB+1}")
    red32([s3], PB)
    GR = T + 8
    bf16r(GR, s1)
    a(f"v_mul_f32 v{s3}, {fh(1/512)}, v{s3}")
    bf16r(s2, s2); bf16r(s3, s3)
    a(f"v_mul_f32 v{s2}, {fh(-1.4426950408889634)}, v{s2}\nv_add_f32 v{s3}, {fh(1e-5)}, v{s3}\nv_exp_f32 v{s2}, v{s2}")
    bf16r(s3, s3)
    a(f"v_add_f32 v{s2}, 1.0, v{s2}\nv_sqrt_f32 v{s3}, v{s3}\nv_rcp_f32 v{s2}, v{s2}")
    bf16r(s3, s3); bf16r(GR+2, s2)
    a(f"v_rcp_f32 v{GR+1}, v{s3}\nv_mov_b32 v{GR+3}, s{S_TAGG}")
    a(f"v_mov_b32 v{s1}, {OOB}\nv_cmp_eq_u32 vcc, 0, v1\nv_lshlrev_b32 v{s2}, 4, v2\ns_lshl_b32 s90, s90, 4\ns_add_u32 s90, s90, {WS_ST}\nv_cndmask_b32 v{s1}, v{s1}, v{s2}, vcc")
    vm.op(f"buffer_store_dwordx4 {vr(GR,4)}, v{s1}, {sr(R_WS,4)}, s90 offen sc1", "sts")
    stamp(3, 3)
    vm.wait("c0"); a("s_barrier")
    stamp(3, 4)
    srd(R_W2, P_W2, 1376*1024); srd(R_CRE, P_CRE, 512*1024); srd(R_CIM, P_CIM, 512*1024)
    vm.wait("par")
    params(40, T, T + 8)
    csq(MUL, T, T+8); csq(T, MUL, T+8); csq(MUL, T, T+8)
    csq(NU, MUL, T+8); csq(T, NU, T+8); csq(NU, T, T+8); csq(T, NU, T+8)
    csq(NU8, T, T+8); a(f"v_mov_b32 v{NU}, v{T}\nv_mov_b32 v{NU+1}, v{T+1}"); csq(T, NU8, T+8); csq(NU8, T, T+8)
    S_PU, S_W2, S_HD, S_W2C, S_HDC, S_HDD, S_CO, S_FP = 90, 91, 95, 99, 84, 85, 86, 87
    a(f"s_mul_i32 s{S_PU}, s{u}, {PIECE_U}")
    a(f"v_bfe_u32 v{T}, v0, 2, 2\nv_lshl_add_u32 v{T+1}, v2, 2, v{T}\nv_lshlrev_b32 v{T+1}, 7, v{T+1}\nv_bfe_u32 v{T+2}, v0, 4, 1\nv_lshl_add_u32 v{T+1}, v{T+2}, 5, v{T+1}")
    a(f"v_and_b32 v{T+2}, 3, v0\nv_lshl_add_u32 v{T+1}, v{T+2}, 3, v{T+1}\nv_lshrrev_b32 v{T}, 1, v{T}\nv_lshl_add_u32 v{T+1}, v{T}, 6, v{T+1}\nv_xor_b32 v{T+2}, 64, v{T+1}")
    a(f"v_add_u32 v{VT}, s{S_PU}, v{T+1}\nv_add_u32 v{VT+1}, s{S_PU}, v{T+2}\nv_add_u32 v{VT+2}, {2*SLOT}, v{VT}\nv_add_u32 v{VT+3}, {2*SLOT}, v{VT+1}")
    a(f"v_bfe_u32 v{T}, v1, 1, 3\nv_lshlrev_b32 v{T+1}, 7, v1\nv_add_u32 v{T+1}, s{S_PU}, v{T+1}")
    for s in range(4):
        a(f"v_add_u32 v{T+2}, {2*s}, v2\nv_xor_b32 v{T+2}, v{T+2}, v{T}\nv_lshl_add_u32 v{VC+s}, v{T+2}, 4, v{T+1}\nv_add_u32 v{VC+4+s}, {2*SLOT}, v{VC+s}")
    a(f"v_lshlrev_b32 v{VL16}, 4, v0\nv_and_b32 v{VPOLL}, 7, v0\nv_lshlrev_b32 v{VPOLL}, 2, v{VPOLL}")
    a(f"v_mul_u32_u24 v{VRED}, 272, v1\nv_lshl_add_u32 v{VRED}, v2, 4, v{VRED}\nv_add_u32 v{VRED}, s{S_PU}, v{VRED}")
    for r in range(ACC, ACC + 64): a(f"v_mov_b32 v{r}, 0")
    a(f"s_mul_i32 s{S_T1}, s{S_TT}, {HID_TT}\ns_lshl_b32 s{S_T0}, s{S_TH}, 11\ns_add_u32 s{S_T1}, s{S_T1}, s{S_T0}\ns_lshl_b32 s{S_T2}, s{S_DN}, 7")
    for i in range(4):
        a(f"s_mul_i32 s{S_T0}, s{u}, 11\ns_add_u32 s{S_T0}, s{S_T0}, {3*i}")
        if i == 3: a(f"s_min_u32 s{S_T0}, s{S_T0}, 41")
        a(f"s_lshl_b32 s{S_W2+i}, s{S_T0}, 15\ns_add_u32 s{S_W2+i}, s{S_W2+i}, s{S_T2}\ns_lshl_b32 s{S_HD+i}, s{S_T0}, 13\ns_add_u32 s{S_HD+i}, s{S_HD+i}, s{S_T1}")
    a(f"s_cmp_eq_u32 s{u}, 3\ns_cselect_b32 s{S_W2C}, s{S_W2+1}, s{S_W2+2}")
    def w2_units(stage, n0, n1, piece, tag):
        for n in range(n0, n1):
            i, step = n >> 1, n & 1
            base = S_W2C if (stage == 2 and i == 2) else S_W2 + i
            for h in range(2):
                dma(S_PU, piece*SLOT + (n - n0)*2048 + 1024*h, base, stage*32768 + step*16384 + 8192*h, DW2, R_W2, tag)
    for b in range(1, 8):
        vm.wait(f"c{b}"); a("s_barrier")
        if b <= 4: chunk(b + 3)
        if b == 5: w2_units(0, 0, 4, 0, "wA0")
        if b == 6: w2_units(0, 4, 8, 1, "wA1")
        if b == 7: w2_units(1, 0, 4, 2, "wB0")
    stamp(3, 5)
    a(f"s_cmp_eq_u32 s{u}, 3\ns_cselect_b32 s{S_HDC}, s{S_HD+1}, s{S_HD+2}")
    a(f"s_mul_i32 s{S_HDD}, s{S_TT}, {HID_TT}\ns_lshl_b32 s{S_T0}, s{S_TH}, 11\ns_add_u32 s{S_HDD}, s{S_HDD}, s{S_T0}\ns_lshl_b32 s{S_T0}, s{u}, 16\ns_add_u32 s{S_HDD}, s{S_HDD}, s{S_T0}\ns_add_u32 s{S_HDD}, s{S_HDD}, {86*4096}")
    a(f"s_lshl_b32 s{S_CO}, s{S_DN}, 16\ns_lshl_b32 s{S_T0}, s{u}, 8\ns_add_u32 s{S_CO}, s{S_CO}, s{S_T0}")
    a(f"s_lshl_b32 s{S_FP}, s{S_TT}, 2\ns_add_u32 s{S_FP}, s{S_FP}, s{u}\ns_lshl_b32 s{S_FP}, s{S_FP}, 1\ns_add_u32 s{S_FP}, s{S_FP}, s{S_TH}\ns_lshl_b32 s{S_FP}, s{S_FP}, 9\ns_add_u32 s{S_FP}, s{S_FP}, {WS_FL}")
    a("s_barrier")
    stamp(3, 6)
    a(f"s_cmp_lg_u32 s{u}, 0\ns_cbranch_scc1 L_L_NOLB")
    q_save = list(vm.q)
    EE, RA, RB = T + 8, T + 4, T + 6
    a(f"v_lshlrev_b32 v{T}, 4, v1\nv_add_u32 v{T+1}, {L_E}, v{T}")
    for k in range(8): a(f"ds_read_b128 {vr(EE+4*k,4)}, v{T+1} offset:{k*512}")
    a(f"s_lshl_b32 s{S_T1}, s{S_J}, 4\ns_add_u32 s{S_T1}, s{S_T1}, s{S_TT}\ns_lshl_b32 s{S_T1}, s{S_T1}, 9\ns_add_u32 s{S_T1}, s{S_T1}, {WS_SG}")
    a("s_waitcnt lgkmcnt(0)")
    cur = EE; nx = RA
    for sg in range(1, 16):
        horner(cur, MUL, EE + 2*sg, nx); cur = nx; nx = RB if nx == RA else RA
    assert cur == RA
    a(f"v_mov_b32 v{RA+2}, s{S_TAGC}\nv_mov_b32 v{RA+3}, s{S_TAGC}")
    vm.op(f"buffer_store_dwordx4 {vr(RA,4)}, v{T}, {sr(R_WS,4)}, s{S_T1} offen sc1", "sg")
    w2_units(1, 4, 8, 3, "wB1")
    VO, VX_, LB = T + 40, T + 48, T + 64
    a(f"s_sub_u32 s{S_T2}, s{S_TT}, 1\nv_lshlrev_b32 v{T+1}, 3, v2\nv_sub_u32 v{T+1}, s{S_T2}, v{T+1}\nv_lshl_add_u32 v{T+2}, v{T+1}, 9, v{T}\nv_mov_b32 v{T+3}, {OOB}\nv_mov_b32 v{T+56}, s{S_TAGC}")
    for i in range(8):
        a(f"v_cmp_le_i32 vcc, {i}, v{T+1}\nv_subrev_u32 v{VO+i}, {512*i}, v{T+2}\ns_nop 0\nv_cndmask_b32 v{VO+i}, v{T+3}, v{VO+i}, vcc\nv_cndmask_b32 v{VX_+i}, 0, v{T+56}, vcc")
    a(f"s_lshl_b32 s{S_T1}, s{S_J}, 13\ns_add_u32 s{S_T1}, s{S_T1}, {WS_SG}\ns_mov_b32 s{S_T2}, {SPIN}")
    a.label("L_L_LB")
    for i in range(8): a(f"buffer_load_dwordx4 {vr(LB+4*i,4)}, v{VO+i}, {sr(R_WS,4)}, s{S_T1} offen sc1")
    a(f"s_mov_b64 s[88:89], 0\ns_sub_u32 s{S_T2}, s{S_T2}, 1\ns_waitcnt vmcnt(0)")
    for i in range(8): a(f"v_cmp_ne_u32 vcc, v{LB+4*i+2}, v{VX_+i}\ns_or_b64 s[88:89], s[88:89], vcc")
    a(f"s_cmp_eq_u32 s{S_T2}, 0\ns_cbranch_scc1 L_L_LBOK\ns_cmp_lg_u64 s[88:89], 0\ns_cbranch_scc1 L_L_LB")
    a.label("L_L_LBOK")
    cur = LB + 28; nx = RA
    for i in range(6, -1, -1):
        horner(cur, NU, LB + 4*i, nx); cur = nx; nx = RB if nx == RA else RA
    assert cur == RA
    a(f"v_mov_b32 v{RB}, v{RA}\nv_mov_b32 v{RB+1}, v{RA+1}\ns_nop 1\nv_permlane32_swap_b32 v{RA}, v{RB}\nv_permlane32_swap_b32 v{RA+1}, v{RB+1}\ns_nop 0")
    horner(RB, NU8, RA, EE)
    a(f"v_lshlrev_b32 v{T+1}, 3, v1\nv_add_u32 v{T+1}, {L_H}, v{T+1}\nds_write_b64 v{T+1}, {vr(EE,2)}")
    a(f"s_cmp_lg_u32 s{S_TT}, 15\ns_cbranch_scc1 L_L_LBE\ns_lshl_b32 s{S_T1}, s{S_J}, 7\ns_add_u32 s{S_T1}, s{S_T1}, {WS_WC}\nv_mov_b32 v{T}, 0")
    a(f"buffer_store_dword v{T+56}, v{T}, {sr(R_WS,4)}, s{S_T1} offen sc1")
    a("s_branch L_L_LBE")
    a.label("L_L_NOLB")
    vm.q = q_save
    w2_units(1, 4, 8, 3, "wB1")
    a.label("L_L_LBE")
    stamp(3, 7)
    a("s_waitcnt lgkmcnt(0)\ns_barrier")
    stamp(3, 8)
    def poll(stage):
        a(f"s_mov_b32 s{S_T2}, {SPIN}")
        a.label(f"L_L_P{stage}")
        a(f"buffer_load_dword v{34}, v{VPOLL}, {sr(R_WS,4)}, s{S_FP} offen offset:{stage*128} sc1\ns_sub_u32 s{S_T2}, s{S_T2}, 1\ns_waitcnt vmcnt(0)")
        a(f"v_cmp_ne_u32 vcc, s{S_TAGG}, v34\ns_cmp_eq_u32 s{S_T2}, 0\ns_cbranch_scc1 L_L_Q{stage}\ns_cbranch_vccnz L_L_P{stage}")
        a.label(f"L_L_Q{stage}")
        vm.q = []
    def hid_loads(batch, hb):
        n = {0: 8, 1: 8, 2: 6, 3: 8, 4: 8}[batch]
        for k in range(n):
            if batch < 3:
                i, step = k >> 1, k & 1
                base = S_HDC if (batch == 2 and i == 2) else S_HD + i
                imm = batch*8192 + step*4096
            else:
                b = batch - 3; part, s = k >> 2, k & 3
                base = S_HDD; imm = (8*b + 4*(s >> 1) + 2*part + (s & 1)) * 4096
            a(f"s_add_u32 s{S_T0}, s{base}, {imm}")
            for tw in range(2):
                vm.op(f"buffer_load_dwordx4 {vr(HB[hb]+8*k+4*tw,4)}, v{VL16}, {sr(R_WS,4)}, s{S_T0} offen offset:{tw*1024} sc1", f"h{batch}_{k}")
    def c_chunk(dchunk, piece):
        b, part = dchunk >> 1, dchunk & 1
        for i in range(8):
            dma(S_PU, piece*SLOT + 1024*i, S_CO, 128*b + 8192*i, DB + (i & 1), R_CIM if part else R_CRE, f"wD{dchunk}")
    PIECES = {0: [0, 1], 1: [2, 3], 2: [0, 1], 3: [2, 3], 4: [0, 1]}
    WTAG = {0: ["wA0", "wA1"], 1: ["wB0", "wB1"], 2: ["wC0", "wC1"], 3: ["wD0", "wD1"], 4: ["wD2", "wD3"]}
    def wreads(batch, k, ws):
        piece = PIECES[batch][k >> 2]; kk = k & 3; hi = piece >> 1; po = (piece & 1) * SLOT
        out = []
        if batch < 3:
            for dt in range(2):
                for q in range(2):
                    out.append(f"ds_read_b64_tr_b16 {vr(WF[ws]+4*dt+2*q,2)}, v{VT+2*hi+dt} offset:{po+kk*2048+q*1024}")
        else:
            for dt in range(2): out.append(f"ds_read_b128 {vr(WF[ws]+4*dt,4)}, v{VC+4*hi+kk} offset:{po+dt*4096}")
        return out
    wsel = [0]
    def consume(batch, hb, refills):
        n = {0: 8, 1: 8, 2: 6, 3: 8, 4: 8}[batch]
        vm.wait(WTAG[batch][0])
        for l in wreads(batch, 0, wsel[0]): a(l)
        for k in range(n):
            ws = wsel[0]
            if batch == 2 and k == 4: a(f"s_cmp_eq_u32 s{u}, 3\ns_cbranch_scc1 L_L_SKIPC")
            vm.wait(f"h{batch}_{k}")
            if k + 1 < n and ((k + 1) & 3) == 0: vm.wait(WTAG[batch][(k + 1) >> 2])
            a("s_waitcnt lgkmcnt(0)")
            nr = wreads(batch, k + 1, ws ^ 1) if k + 1 < n else []
            for idx, (dt, tw) in enumerate(((0, 0), (0, 1), (1, 0), (1, 1))):
                A = ACC + 32*tw + 16*dt
                a(f"v_mfma_f32_32x32x16_bf16 {vr(A,16)}, {vr(WF[ws]+4*dt,4)}, {vr(HB[hb]+8*k+4*tw,4)}, {vr(A,16)}")
                if idx < 2:
                    h = len(nr) // 2
                    for l in nr[idx*h:(idx + 1)*h]: a(l)
            wsel[0] ^= 1
            if k in refills and not (batch == 2 and k == 5): refills[k]()
        if batch == 2:
            a.label("L_L_SKIPC")
            a("s_waitcnt lgkmcnt(0)")
            refills[5]()
    poll(0); stamp(3, 9); hid_loads(0, 0)
    poll(1); stamp(3, 10); hid_loads(1, 1)
    consume(0, 0, {3: lambda: w2_units(2, 0, 4, 0, "wC0"), 7: lambda: w2_units(2, 4, 6, 1, "wC1")})
    poll(2); stamp(3, 11); hid_loads(2, 0)
    consume(1, 1, {3: lambda: c_chunk(0, 2), 7: lambda: c_chunk(1, 3)})
    poll(3); stamp(3, 12); hid_loads(3, 1)
    consume(2, 0, {3: lambda: c_chunk(2, 0), 5: lambda: c_chunk(3, 1)})
    hid_loads(4, 0)
    consume(3, 1, {})
    consume(4, 0, {})
    stamp(3, 13)
    a("s_nop 7\ns_nop 3")
    for tw in range(2):
        for dt in range(2):
            for jj in range(4):
                a(f"ds_write_b128 v{VRED}, {vr(ACC+32*tw+16*dt+4*jj,4)} offset:{tw*SLOT+dt*128+jj*32}")
    a("s_waitcnt lgkmcnt(0)")
    stamp(3, 14)
    a("s_barrier")
    if prof:
        a(f"s_lshl_b32 s{S_T0}, s2, 3\ns_add_u32 s{S_T0}, s{S_T0}, s{S_WAVE}\ns_lshl_b32 s{S_T0}, s{S_T0}, 8\ns_add_u32 s{S_T0}, s{S_T0}, {WS_PROF}\nv_lshlrev_b32 v4, 2, v0\nbuffer_store_dword v3, v4, {sr(R_WS,4)}, s{S_T0} offen")
    a.label("L_END")
    a("s_endpgm")

    msgs = check_hazards(a.lines, "linear")
    msgs += check_hazards(a.lines[loop0:loop1] + a.lines[loop0:loop1], "gemm-loop")
    for m in msgs: print("HAZARD", m, file=sys.stderr)

    hdr = open("gated_mix__ssm_conv_s5__mixer_channel_mlp__prompt.s.ref").read().split("; Override")[0]
    out = hdr + "; Override launch geometry by editing the next line (default: block=256,\n; grid=ceil(out_elems/256), lds=0). Harness parses it; keep it on one line.\n"
    out += "; @launch grid=(256,1,1) block=(512,1,1) lds=163840\n"
    out += f'.amdgcn_target "amdgcn-amd-amdhsa--gfx950"\n.text\n.globl {KNAME}\n.p2align 8\n.type {KNAME},@function\n{KNAME}:\n'
    out += a.text()
    out += f""".section .rodata,"a"
.p2align 6
.amdhsa_kernel {KNAME}
  .amdhsa_next_free_vgpr 256
  .amdhsa_next_free_sgpr 102
  .amdhsa_accum_offset 256
  .amdhsa_group_segment_fixed_size 0
  .amdhsa_kernarg_size 144
  .amdhsa_user_sgpr_count 2
  .amdhsa_user_sgpr_kernarg_segment_ptr 1
  .amdhsa_system_sgpr_workgroup_id_x 1
.end_amdhsa_kernel
"""
    return out

if __name__ == "__main__":
    prof = "--prof" in sys.argv
    out = [x for x in sys.argv[1:] if not x.startswith("--")]
    open(out[0], "w").write(gen(prof))
```

```python
import sys, struct
from asmlib import *

KNAME = "gated_mix__ssm_conv_s5__mixer_channel_mlp__prompt_kernel"
def f2u(x): return struct.unpack("<I", struct.pack("<f", x))[0]
def fh(x): return "0x%08x" % f2u(x)

WS_HID = 0; HID_TT = 150*4096
WS_ST = 0xA00000; WS_SG = 0xA10000; WS_FL = 0xA40000; WS_WG = 0xA60000; WS_WC = 0xA61000; WS_USED = 0xA70000
WS_PROF = 0xB00000
SLOT = 36864; L_B = 16384; L_W1 = 24576; PIECE_U = 9216
L_E = 147456; L_CS = L_E + 4096; L_B1 = L_CS + 384; L_G2 = L_B1 + 384; L_H = L_G2 + 512; L_TR = L_H + 256
L_ST = 3*SLOT + 8192
assert L_TR + 4*2560 <= 163840
OOB = 0x7ff00000
SPIN = 200000
S_WAVE, S_TT, S_J, S_U, S_TH, S_DN, S_CT0, S_NT, S_TAGG, S_TAGC = 3, 4, 5, 6, 7, 8, 9, 10, 11, 12
S_T0, S_T1, S_T2 = 13, 14, 15
P_X, P_LRE, P_LIM, P_BRE, P_BIM, P_CRE, P_CIM, P_LDT, P_DSK, P_BX, P_W1, P_B1, P_W2, P_B2, P_GW, P_OUT, P_DBG, P_WS = range(16, 52, 2)
R_X, R_B, R_W1, R_W2, R_CRE, R_CIM, R_WS, R_OUT = range(52, 84, 4)

class VM:
    def __init__(self, a): self.a = a; self.q = []
    def op(self, text, tag=None): self.a(text); self.q.append(tag)
    def wait(self, tag):
        idx = [i for i, t in enumerate(self.q) if t == tag]
        if not idx: return
        n = len(self.q) - 1 - idx[-1]
        assert n <= 63, (tag, n)
        self.a(f"s_waitcnt vmcnt({n})"); self.q = self.q[idx[-1] + 1:]
    def drain(self): self.a("s_waitcnt vmcnt(0)"); self.q = []

class G:
    def __init__(self, prof=False, **opt):
        self.a = Asm(); self.prof = prof; self.opt = opt; self.loops = []
    def stamp(self, idx):
        if self.prof: self.a(f"s_memtime s[100:101]\ns_waitcnt lgkmcnt(0)\nv_writelane_b32 v3, s100, {idx}")
    def prof_store(self):
        if self.prof:
            self.a(f"s_lshl_b32 s{S_T0}, s2, 3\ns_add_u32 s{S_T0}, s{S_T0}, s{S_WAVE}\ns_lshl_b32 s{S_T0}, s{S_T0}, 8\ns_add_u32 s{S_T0}, s{S_T0}, {WS_PROF}\nv_lshlrev_b32 v4, 2, v0\nbuffer_store_dword v3, v4, {sr(R_WS,4)}, s{S_T0} offen")
    def srd_ws(self):
        off = self.opt.get("wsoff", 0) << 20
        if off: self.a(f"s_add_u32 s{P_WS}, s{P_WS}, {off}\ns_addc_u32 s{P_WS+1}, s{P_WS+1}, 0")
        self.srd(R_WS, P_WS, WS_USED if not self.prof else 0xC00000)
    def srd(self, r, p, size):
        self.a(f"s_mov_b32 s{r}, s{p}\ns_mov_b32 s{r+1}, s{p+1}\ns_mov_b32 s{r+2}, {size}\ns_mov_b32 s{r+3}, 0x20000")
    def bf16r(self, d, s):
        self.a(f"v_cvt_pk_bf16_f32 v{d}, v{s}, v{s}\nv_and_b32 v{d}, 0xffff0000, v{d}")
    def csq(self, d, s, t):
        self.a(f"v_mul_f32 v{t}, v{s+1}, v{s+1}\nv_mul_f32 v{t+1}, v{s}, v{s+1}\nv_fma_f32 v{d}, v{s}, v{s}, -v{t}\nv_add_f32 v{d+1}, v{t+1}, v{t+1}")
    def horner(self, r, mu, e, rn):
        self.a(f"v_pk_fma_f32 {vr(rn,2)}, {vr(r,2)}, {vr(mu,2)}, {vr(e,2)} op_sel_hi:[1,0,1]")
        self.a(f"v_pk_fma_f32 {vr(rn,2)}, {vr(r,2)}, {vr(mu+2,2)}, {vr(rn,2)} op_sel:[1,0,0] op_sel_hi:[0,1,1]")
    def hprep(self, mu):
        self.a(f"v_sub_f32 v{mu+2}, 0, v{mu+1}\nv_mov_b32 v{mu+3}, v{mu+1}")
    def params(self, vin, LAM, T, COEF=None):
        a = self.a
        A_, B_, D_ = vin, vin + 1, vin + 2
        a(f"v_lshlrev_b32 v{D_}, 16, v{D_}\nv_lshlrev_b32 v{A_}, 16, v{A_}\nv_mul_f32 v{D_}, {fh(1.4426950408889634)}, v{D_}\nv_lshlrev_b32 v{B_}, 16, v{B_}")
        a(f"v_exp_f32 v{D_}, v{D_}\ns_nop 0")
        self.bf16r(D_, D_)
        a(f"v_mul_f32 v{T}, v{D_}, v{A_}\nv_mul_f32 v{T+1}, v{D_}, v{B_}")
        a(f"v_mul_f32 v{T}, {fh(1.4426950408889634)}, v{T}\nv_mul_f32 v{T+1}, 0.15915494, v{T+1}")
        a(f"v_exp_f32 v{T}, v{T}\nv_fract_f32 v{T+1}, v{T+1}\ns_nop 0\nv_cos_f32 v{T+2}, v{T+1}\nv_sin_f32 v{T+3}, v{T+1}\ns_nop 0")
        a(f"v_mul_f32 v{LAM}, v{T}, v{T+2}\nv_mul_f32 v{LAM+1}, v{T}, v{T+3}")
        if COEF is not None:
            a(f"v_mul_f32 v{T+4}, v{A_}, v{A_}\nv_add_f32 v{T}, -1.0, v{LAM}\nv_fmac_f32 v{T+4}, v{B_}, v{B_}")
            a(f"v_mul_f32 v{T+1}, v{T}, v{A_}\nv_rcp_f32 v{T+4}, v{T+4}\nv_mul_f32 v{T+2}, v{LAM+1}, v{A_}")
            a(f"v_fmac_f32 v{T+1}, v{LAM+1}, v{B_}\nv_fma_f32 v{T+2}, -v{T}, v{B_}, v{T+2}")
            a(f"v_mul_f32 v{COEF}, v{T+1}, v{T+4}\nv_mul_f32 v{COEF+1}, v{T+2}, v{T+4}")
    def tag_from(self, sd, v):
        self.a(f"v_readfirstlane_b32 s{sd}, v{v}\ns_nop 0\ns_mul_i32 s{sd}, s{sd}, 0x9e3779b1\ns_add_u32 s{sd}, s{sd}, 0x7f4a7c15")

    def common(self):
        a = self.a
        a(f"s_cmp_ge_u32 s2, 256\ns_cbranch_scc1 L_END")
        a("s_load_dwordx16 s[16:31], s[0:1], 0\ns_load_dwordx16 s[32:47], s[0:1], 64\ns_load_dwordx4 s[48:51], s[0:1], 128")
        if self.prof:
            a("v_mov_b32 v3, 0\ns_memrealtime s[98:99]\ns_memtime s[100:101]")
        a(f"v_lshrrev_b32 v1, 6, v0\nv_and_b32 v0, 63, v0\ns_lshr_b32 s{S_T1}, s2, 3\nv_readfirstlane_b32 s{S_WAVE}, v1")
        a(f"s_and_b32 s{S_J}, s{S_T1}, 7\ns_and_b32 s{S_T0}, s2, 1\ns_lshl_b32 s{S_T0}, s{S_T0}, 3\ns_add_u32 s{S_J}, s{S_J}, s{S_T0}")
        a(f"s_lshr_b32 s{S_T1}, s{S_T1}, 3\ns_and_b32 s{S_T0}, s2, 6\ns_lshl_b32 s{S_T0}, s{S_T0}, 1\ns_add_u32 s{S_TT}, s{S_T0}, s{S_T1}")
        a(f"s_and_b32 s{S_U}, s{S_WAVE}, 3\ns_bfe_u32 s{S_TH}, s{S_J}, 0x10002\ns_lshr_b32 s{S_DN}, s{S_J}, 3\ns_lshl_b32 s{S_DN}, s{S_DN}, 2\ns_and_b32 s{S_T1}, s{S_J}, 3\ns_add_u32 s{S_DN}, s{S_DN}, s{S_T1}")
        a(f"s_lshr_b32 s{S_T0}, s{S_J}, 2\ns_mul_i32 s{S_T0}, s{S_T0}, 11\ns_mul_i32 s{S_CT0}, s{S_T1}, 3\ns_add_u32 s{S_CT0}, s{S_CT0}, s{S_T0}\ns_min_u32 s{S_CT0}, s{S_CT0}, 41")
        a(f"s_cmp_eq_u32 s{S_T1}, 3\ns_cselect_b32 s{S_NT}, 2, 3\ns_cmp_eq_u32 s{S_J}, 14\ns_cselect_b32 s{S_NT}, 2, s{S_NT}")
        a("v_and_b32 v1, 31, v0\nv_lshrrev_b32 v2, 5, v0")
        a(f"s_cmp_lt_u32 s{S_WAVE}, 4\ns_cbranch_scc1 L_COMPUTE")
    def after_kernarg(self):
        a = self.a
        a("s_waitcnt lgkmcnt(0)")
        if self.prof: a("v_writelane_b32 v3, s98, 63\nv_writelane_b32 v3, s100, 0")
        self.srd(R_X, P_X, 2048*1024)

    def loader(self):
        a = self.a; stamp = self.stamp; horner = self.horner; csq = self.csq
        vm = VM(a)
        u = S_U
        DX, DB, DW, DW2 = 4, 6, 8, 11
        VT, VC, VL16, VPOLL, VRED, VPR = 12, 16, 24, 25, 26, 27
        MUL, NU, NU8 = 28, 36, 40
        WF = [48, 56]; ACC = 64; HB = 128
        S_XO, S_BO, S_WO, S_M0X, S_M0B, S_M0W = 84, 85, 86, 87, 88, 89
        T = 128
        t_, p_ = T + 5, T + 6
        a(f"v_lshrrev_b32 v{t_}, 3, v0\nv_and_b32 v{p_}, 7, v0\nv_lshrrev_b32 v{T+7}, 1, v{t_}\nv_xor_b32 v{T+7}, v{T+7}, v{p_}\nv_lshlrev_b32 v{T+7}, 4, v{T+7}")
        a(f"v_lshl_add_u32 v{DB}, v{t_}, 10, v{T+7}\nv_xor_b32 v{DB+1}, 64, v{DB}")
        a(f"v_lshrrev_b32 v{DX}, 2, v{t_}\nv_lshlrev_b32 v{DX}, 4, v{DX}\nv_and_b32 v{DX+1}, 1, v{t_}\nv_lshl_add_u32 v{DX}, v{DX+1}, 3, v{DX}\nv_bfe_u32 v{DX+1}, v{t_}, 1, 1\nv_add_u32 v{DX}, v{DX}, v{DX+1}")
        a(f"v_lshl_add_u32 v{DX}, v{DX}, 10, v{T+7}\nv_lshlrev_b32 v{DW2}, 2, v{DX+1}\nv_xor_b32 v{DX+1}, 64, v{DX}")
        a(f"s_lshl_b32 s{S_XO}, s{S_TT}, 2\ns_add_u32 s{S_XO}, s{S_XO}, s{u}\ns_lshl_b32 s{S_XO}, s{S_XO}, 15")
        a(f"s_lshl_b32 s{S_BO}, s{S_J}, 1\ns_and_b32 s{S_T0}, s{u}, 1\ns_add_u32 s{S_BO}, s{S_BO}, s{S_T0}\ns_lshl_b32 s{S_BO}, s{S_BO}, 14")
        a(f"s_lshl_b32 s{S_M0X}, s{u}, 12\ns_lshl_b32 s{S_M0B}, s{u}, 11")
        self.after_kernarg()
        def dma(m0base, m0imm, sob, soimm, vaddr, rs, tag, fl=""):
            a(f"s_add_u32 m0, s{m0base}, {m0imm}\ns_add_u32 s{S_T0}, s{sob}, {soimm}")
            vm.op(f"buffer_load_dwordx4 v{vaddr}, {sr(rs,4)}, s{S_T0} offen {fl} lds", tag)
        def chunk(c, parts="xbw"):
            sl = (c % 3) * SLOT
            if "x" in parts:
                for i in range(4): dma(S_M0X, sl + 1024*i, S_XO, 2048*i + 128*c, DX + (i & 1), R_X, f"c{c}")
            if "b" in parts:
                for i in range(2): dma(S_M0B, sl + L_B + 1024*i, S_BO, 8192*i + 128*c, DB + i, R_B, f"c{c}")
            if "w" in parts:
                for n in range(3): dma(S_M0W, sl + L_W1 + 1024*n, S_WO, 64*2752*c, DW + n, R_W1, f"c{c}")
        chunk(0, "x")
        a(f"s_cmp_ge_u32 s{u}, 2\ns_cselect_b32 s{R_B}, s{P_BIM}, s{P_BRE}\ns_cselect_b32 s{R_B+1}, s{P_BIM+1}, s{P_BRE+1}\ns_mov_b32 s{R_B+2}, {512*1024}\ns_mov_b32 s{R_B+3}, 0x20000")
        chunk(0, "b")
        self.srd(R_W1, P_W1, 512*2752)
        a(f"v_xor_b32 v{DW2}, v{DW2}, v{p_}\nv_lshlrev_b32 v{DW2}, 4, v{DW2}\nv_lshl_add_u32 v{DW2}, v{t_}, 10, v{DW2}")
        a(f"s_cmp_eq_u32 s{S_NT}, 2\ns_cselect_b32 s{S_T1}, 7, 11\ns_movk_i32 s{S_T2}, 2752")
        for n in range(3):
            a(f"v_add_u32 v{t_}, {64*n}, v0\nv_mul_u32_u24 v{p_}, 171, v{t_}\nv_lshrrev_b32 v{p_}, 11, v{p_}\nv_mul_u32_u24 v{T+7}, 12, v{p_}\nv_sub_u32 v{t_}, v{t_}, v{T+7}")
            a(f"v_cmp_lt_u32 vcc, s{S_T1}, v{t_}\nv_subrev_u32 v{T+7}, 4, v{t_}\nv_mul_u32_u24 v{p_}, s{S_T2}, v{p_}\nv_cndmask_b32 v{t_}, v{t_}, v{T+7}, vcc\nv_lshl_add_u32 v{DW+n}, v{t_}, 4, v{p_}")
        a(f"s_mul_i32 s{S_WO}, s{u}, {16*2752}\ns_lshl_b32 s{S_T1}, s{S_CT0}, 6\ns_add_u32 s{S_WO}, s{S_WO}, s{S_T1}\ns_mul_i32 s{S_M0W}, s{u}, 3072")
        chunk(0, "w")
        stamp(1)
        chunk(1)
        stamp(2)
        S_PU, S_W2, S_HD, S_W2C, S_HDC, S_HDD, S_CO, S_FP = 90, 91, 95, 99, 84, 85, 86, 87
        VCS, CA, CF, ONES = 34, 144, 128, 32
        a(f"v_bfe_u32 v{VCS}, v0, 2, 2\nv_lshl_add_u32 v{VCS}, v2, 3, v{VCS}\nv_mul_u32_u24 v{VCS}, 192, v{VCS}\nv_bfe_u32 v{VCS+1}, v0, 4, 1\nv_lshl_add_u32 v{VCS}, v{VCS+1}, 5, v{VCS}")
        a(f"v_and_b32 v{VCS+1}, 3, v0\nv_lshl_add_u32 v{VCS}, v{VCS+1}, 3, v{VCS}\ns_lshl_b32 s{S_T0}, s{u}, 6\ns_add_u32 s{S_T0}, s{S_T0}, {L_W1}\nv_add_u32 v{VCS}, s{S_T0}, v{VCS}\nv_add_u32 v{VCS+1}, {2*SLOT}, v{VCS}")
        a(f"v_mov_b32 v{ONES}, 0x3f803f80\nv_mov_b32 v{ONES+1}, 0x3f803f80")
        for r in range(CA, CA + 16, 2): a(f"v_mov_b64 {vr(r,2)}, 0")
        def cs_reads(c):
            sl = c % 3
            for k in range(8): a(f"ds_read_b64_tr_b16 {vr(CF+2*k,2)}, v{VCS+(sl>>1)} offset:{(sl&1)*SLOT+(k>>1)*3072+(k&1)*768}")
        def cs_mfma():
            a("s_waitcnt lgkmcnt(0)")
            for k in range(8): a(f"v_mfma_f32_4x4x4_16b_bf16 {vr(CA+4*(k&3),4)}, {vr(ONES,2)}, {vr(CF+2*k,2)}, {vr(CA+4*(k&3),4)}")
        T = 160
        def tags():
            self.srd_ws()
            a(f"s_lshl_b32 s{S_T0}, s{S_TT}, 7\ns_add_u32 s{S_T0}, s{S_T0}, {WS_WG}\nv_mov_b32 v{T}, 0\ns_lshl_b32 s{S_T1}, s{S_J}, 7\ns_add_u32 s{S_T1}, s{S_T1}, {WS_WC}")
            vm.op(f"buffer_load_dword v47, v{T}, {sr(R_WS,4)}, s{S_T0} offen sc1", "par")
            vm.op(f"buffer_load_dword v48, v{T}, {sr(R_WS,4)}, s{S_T1} offen sc1", "par")
            a(f"s_lshl_b32 s{S_T1}, s{S_J}, 6\nv_lshl_add_u32 v{T+3}, v1, 1, s{S_T1}")
            vm.op(f"global_load_ushort v44, v{T+3}, {sr(P_LRE,2)}", "par")
            vm.op(f"global_load_ushort v45, v{T+3}, {sr(P_LIM,2)}", "par")
            vm.op(f"global_load_ushort v46, v{T+3}, {sr(P_LDT,2)}", "par")
        def setup():
            self.srd(R_W2, P_W2, 1376*1024); self.srd(R_CRE, P_CRE, 512*1024); self.srd(R_CIM, P_CIM, 512*1024)
            a(f"s_mul_i32 s{S_PU}, s{u}, {PIECE_U}")
            a(f"v_bfe_u32 v{T}, v0, 2, 2\nv_lshl_add_u32 v{T+1}, v2, 2, v{T}\nv_lshlrev_b32 v{T+1}, 7, v{T+1}\nv_bfe_u32 v{T+2}, v0, 4, 1\nv_lshl_add_u32 v{T+1}, v{T+2}, 5, v{T+1}")
            a(f"v_and_b32 v{T+2}, 3, v0\nv_lshl_add_u32 v{T+1}, v{T+2}, 3, v{T+1}\nv_lshrrev_b32 v{T}, 1, v{T}\nv_lshl_add_u32 v{T+1}, v{T}, 6, v{T+1}\nv_xor_b32 v{T+2}, 64, v{T+1}")
            a(f"v_add_u32 v{VT}, s{S_PU}, v{T+1}\nv_add_u32 v{VT+1}, s{S_PU}, v{T+2}\nv_add_u32 v{VT+2}, {2*SLOT}, v{VT}\nv_add_u32 v{VT+3}, {2*SLOT}, v{VT+1}")
            a(f"v_bfe_u32 v{T}, v1, 1, 3\nv_lshlrev_b32 v{T+1}, 7, v1\nv_add_u32 v{T+1}, s{S_PU}, v{T+1}")
            for s in range(4):
                a(f"v_add_u32 v{T+2}, {2*s}, v2\nv_xor_b32 v{T+2}, v{T+2}, v{T}\nv_lshl_add_u32 v{VC+s}, v{T+2}, 4, v{T+1}\nv_add_u32 v{VC+4+s}, {2*SLOT}, v{VC+s}")
            a(f"v_lshlrev_b32 v{VL16}, 4, v0\nv_and_b32 v{VPOLL}, 7, v0\nv_lshlrev_b32 v{VPOLL}, 2, v{VPOLL}")
            a(f"v_mul_u32_u24 v{VRED}, 272, v1\nv_lshl_add_u32 v{VRED}, v2, 4, v{VRED}\nv_add_u32 v{VRED}, s{S_PU}, v{VRED}")
            for r in range(ACC, ACC + 64, 2): a(f"v_mov_b64 {vr(r,2)}, 0")
            a(f"s_mul_i32 s{S_T1}, s{S_TT}, {HID_TT}\ns_lshl_b32 s{S_T0}, s{S_TH}, 11\ns_add_u32 s{S_T1}, s{S_T1}, s{S_T0}\ns_lshl_b32 s{S_T2}, s{S_DN}, 7")
            for i in range(4):
                a(f"s_mul_i32 s{S_T0}, s{u}, 11\ns_add_u32 s{S_T0}, s{S_T0}, {3*i}")
                if i == 3: a(f"s_min_u32 s{S_T0}, s{S_T0}, 41")
                a(f"s_lshl_b32 s{S_W2+i}, s{S_T0}, 15\ns_add_u32 s{S_W2+i}, s{S_W2+i}, s{S_T2}\ns_lshl_b32 s{S_HD+i}, s{S_T0}, 13\ns_add_u32 s{S_HD+i}, s{S_HD+i}, s{S_T1}")
            a(f"s_cmp_eq_u32 s{u}, 3\ns_cselect_b32 s{S_W2C}, s{S_W2+1}, s{S_W2+2}")
        steps = [("m", 0, k) for k in range(8)] + [("m", 1, k) for k in range(8)] + [("m", 2, k) for k in range(6)] + [("s", 3, k) for k in range(16)]
        groups = [(0, 4, 3), (4, 8, 2), (8, 12, 0), (12, 16, 1), (16, 20, 3), (20, 22, 2), (22, 26, 0), (26, 30, 1), (30, 34, 3), (34, 38, 2)]
        grp_of = {}
        for gi, (n0, n1, pc) in enumerate(groups):
            for n in range(n0, n1): grp_of[n] = gi
        def wdmas(gi):
            n0, n1, pc = groups[gi]; out = []
            if steps[n0][0] == "m":
                for n in range(n0, n1):
                    _, stage, k = steps[n]; i, step = k >> 1, k & 1
                    base = S_W2C if (stage == 2 and i == 2) else S_W2 + i
                    for h in range(2):
                        out.append((S_PU, pc*SLOT + (n - n0)*2048 + 1024*h, base, stage*32768 + step*16384 + 8192*h, DW2, R_W2, f"w{gi}"))
            else:
                dch = steps[n0][2] >> 2; b, part = dch >> 1, dch & 1
                for i in range(8):
                    out.append((S_PU, pc*SLOT + 1024*i, S_CO, 128*b + 8192*i, DB + (i & 1), R_CIM if part else R_CRE, f"w{gi}"))
            return out
        for b in range(0, 8):
            vm.wait(f"c{b}"); a("s_barrier")
            stamp(16 + b)
            a(f"s_cmp_eq_u32 s{u}, 3\ns_cbranch_scc1 L_L_CR{b}")
            cs_reads(b)
            a.label(f"L_L_CR{b}")
            if b == 0: tags()
            if b <= 5: chunk(b + 2)
            if b == 0: setup()
            if b == 1:
                vm.wait("par")
                self.tag_from(S_TAGG, 47); self.tag_from(S_TAGC, 48)
                self.params(44, T, T + 8)
                csq(MUL, T, T+8); csq(T, MUL, T+8); csq(MUL, T, T+8)
                csq(NU, MUL, T+8); csq(T, NU, T+8); csq(NU, T, T+8); csq(T, NU, T+8)
                csq(NU8, T, T+8); a(f"v_mov_b32 v{NU}, v{T}\nv_mov_b32 v{NU+1}, v{T+1}"); csq(T, NU8, T+8); csq(NU8, T, T+8)
                self.hprep(MUL); self.hprep(NU); self.hprep(NU8)
            if b == 4:
                a(f"s_lshl_b32 s{S_T1}, s{S_TT}, 2\ns_add_u32 s{S_T1}, s{S_T1}, s{u}\ns_lshl_b32 s{S_T1}, s{S_T1}, 9\ns_mov_b32 exec_hi, 0")
                dma(S_PU, L_ST, S_T1, WS_ST, VL16, R_WS, "stat", "sc1")
                a("s_mov_b32 exec_hi, -1")
            if b == 6:
                for d in wdmas(0): dma(*d)
            a(f"s_cmp_eq_u32 s{u}, 3\ns_cbranch_scc1 L_L_CM{b}")
            cs_mfma()
            if b == 7:
                a(f"s_lshl_b32 s{S_T0}, s{u}, 7\ns_add_u32 s{S_T0}, s{S_T0}, {L_CS}\nv_lshl_add_u32 v{CF}, v1, 2, s{S_T0}\ns_nop 1")
                a(f"v_add_f32 v{CA}, v{CA}, v{CA+4}\nv_add_f32 v{CA+8}, v{CA+8}, v{CA+12}\nv_add_f32 v{CA}, v{CA}, v{CA+8}\nv_mov_b32 v{CA+1}, v{CA}\ns_nop 1")
                a(f"v_permlane32_swap_b32 v{CA}, v{CA+1}\nv_add_f32 v{CA}, v{CA}, v{CA+1}\nds_write_b32 v{CF}, v{CA}")
            a.label(f"L_L_CM{b}")
        for d in wdmas(1) + wdmas(2): dma(*d)
        stamp(5)
        T = 128
        a(f"s_cmp_eq_u32 s{u}, 3\ns_cselect_b32 s{S_HDC}, s{S_HD+1}, s{S_HD+2}")
        a(f"s_mul_i32 s{S_HDD}, s{S_TT}, {HID_TT}\ns_lshl_b32 s{S_T0}, s{S_TH}, 11\ns_add_u32 s{S_HDD}, s{S_HDD}, s{S_T0}\ns_lshl_b32 s{S_T0}, s{u}, 16\ns_add_u32 s{S_HDD}, s{S_HDD}, s{S_T0}\ns_add_u32 s{S_HDD}, s{S_HDD}, {86*4096}")
        a(f"s_lshl_b32 s{S_CO}, s{S_DN}, 16\ns_lshl_b32 s{S_T0}, s{u}, 8\ns_add_u32 s{S_CO}, s{S_CO}, s{S_T0}")
        a(f"s_lshl_b32 s{S_FP}, s{S_TT}, 2\ns_add_u32 s{S_FP}, s{S_FP}, s{u}\ns_lshl_b32 s{S_FP}, s{S_FP}, 1\ns_add_u32 s{S_FP}, s{S_FP}, s{S_TH}\ns_lshl_b32 s{S_FP}, s{S_FP}, 9\ns_add_u32 s{S_FP}, s{S_FP}, {WS_FL}")
        vm.wait("stat")
        a("s_waitcnt lgkmcnt(0)\ns_barrier")
        stamp(6)
        a(f"s_cmp_lg_u32 s{u}, 0\ns_cbranch_scc1 L_L_NOLB")
        q_save = list(vm.q)
        EE, RA, RB = T + 8, T + 4, T + 6
        a(f"v_lshlrev_b32 v{T}, 4, v1\nv_add_u32 v{T+1}, {L_E}, v{T}")
        for k in range(8): a(f"ds_read_b128 {vr(EE+4*k,4)}, v{T+1} offset:{k*512}")
        a(f"s_lshl_b32 s{S_T1}, s{S_J}, 4\ns_add_u32 s{S_T1}, s{S_T1}, s{S_TT}\ns_lshl_b32 s{S_T1}, s{S_T1}, 9\ns_add_u32 s{S_T1}, s{S_T1}, {WS_SG}")
        a("s_waitcnt lgkmcnt(0)")
        cur = EE; nx = RA
        for sg in range(1, 16):
            horner(cur, MUL, EE + 2*sg, nx); cur = nx; nx = RB if nx == RA else RA
        assert cur == RA
        a(f"v_mov_b32 v{RA+2}, s{S_TAGC}\nv_mov_b32 v{RA+3}, s{S_TAGC}")
        vm.op(f"buffer_store_dwordx4 {vr(RA,4)}, v{T}, {sr(R_WS,4)}, s{S_T1} offen sc1", "sg")
        stamp(24)
        for d in wdmas(3): dma(*d)
        VO, VX_, LB = T + 40, T + 48, T + 64
        a(f"s_sub_u32 s{S_T2}, s{S_TT}, 1\nv_lshlrev_b32 v{T+1}, 3, v2\nv_sub_u32 v{T+1}, s{S_T2}, v{T+1}\nv_lshl_add_u32 v{T+2}, v{T+1}, 9, v{T}\nv_mov_b32 v{T+3}, {OOB}\nv_mov_b32 v{T+56}, s{S_TAGC}")
        for i in range(8):
            a(f"v_cmp_le_i32 vcc, {i}, v{T+1}\nv_subrev_u32 v{VO+i}, {512*i}, v{T+2}\ns_nop 0\nv_cndmask_b32 v{VO+i}, v{T+3}, v{VO+i}, vcc\nv_cndmask_b32 v{VX_+i}, 0, v{T+56}, vcc")
        a(f"s_lshl_b32 s{S_T1}, s{S_J}, 13\ns_add_u32 s{S_T1}, s{S_T1}, {WS_SG}\ns_mov_b32 s{S_T2}, {SPIN}")
        a.label("L_L_LB")
        for i in range(8): a(f"buffer_load_dwordx4 {vr(LB+4*i,4)}, v{VO+i}, {sr(R_WS,4)}, s{S_T1} offen sc1")
        a(f"s_mov_b64 s[88:89], 0\ns_sub_u32 s{S_T2}, s{S_T2}, 1\ns_waitcnt vmcnt(0)")
        for i in range(8): a(f"v_cmp_ne_u32 vcc, v{LB+4*i+2}, v{VX_+i}\ns_or_b64 s[88:89], s[88:89], vcc")
        a(f"s_cmp_eq_u32 s{S_T2}, 0\ns_cbranch_scc1 L_L_LBOK\ns_cmp_lg_u64 s[88:89], 0\ns_cbranch_scc1 L_L_LB")
        a.label("L_L_LBOK")
        cur = LB + 28; nx = RA
        for i in range(6, -1, -1):
            horner(cur, NU, LB + 4*i, nx); cur = nx; nx = RB if nx == RA else RA
        assert cur == RA
        a(f"v_mov_b32 v{RB}, v{RA}\nv_mov_b32 v{RB+1}, v{RA+1}\ns_nop 1\nv_permlane32_swap_b32 v{RA}, v{RB}\nv_permlane32_swap_b32 v{RA+1}, v{RB+1}\ns_nop 0")
        horner(RB, NU8, RA, EE)
        a(f"v_lshlrev_b32 v{T+1}, 3, v1\nv_add_u32 v{T+1}, {L_H}, v{T+1}\nds_write_b64 v{T+1}, {vr(EE,2)}")
        a(f"s_cmp_lg_u32 s{S_TT}, 15\ns_cbranch_scc1 L_L_LBE\ns_lshl_b32 s{S_T1}, s{S_J}, 7\ns_add_u32 s{S_T1}, s{S_T1}, {WS_WC}\nv_mov_b32 v{T}, 0")
        a(f"buffer_store_dword v{T+56}, v{T}, {sr(R_WS,4)}, s{S_T1} offen sc1")
        a("s_branch L_L_LBE")
        a.label("L_L_NOLB")
        vm.q = q_save
        for d in wdmas(3): dma(*d)
        a.label("L_L_LBE")
        stamp(7)
        a("s_waitcnt lgkmcnt(0)\ns_barrier")
        stamp(8)
        RING = 8; DIST = self.opt.get("dist", 7)
        def poll_issue(stage):
            vm.op(f"buffer_load_dword v{VPR}, v{VPOLL}, {sr(R_WS,4)}, s{S_FP} offen offset:{stage*128} sc1", f"p{stage}")
        def poll_check(stage):
            vm.wait(f"p{stage}")
            a(f"v_cmp_ne_u32 vcc, s{S_TAGG}, v{VPR}\ns_mov_b32 s{S_T2}, {SPIN}\ns_nop 0\ns_cbranch_vccz L_L_Q{stage}")
            a.label(f"L_L_P{stage}")
            a(f"buffer_load_dword v{VPR}, v{VPOLL}, {sr(R_WS,4)}, s{S_FP} offen offset:{stage*128} sc1\ns_sub_u32 s{S_T2}, s{S_T2}, 1\ns_waitcnt vmcnt(0)")
            a(f"v_cmp_ne_u32 vcc, s{S_TAGG}, v{VPR}\ns_cmp_eq_u32 s{S_T2}, 0\ns_cbranch_scc1 L_L_Q{stage}\ns_cbranch_vccnz L_L_P{stage}")
            a.label(f"L_L_Q{stage}")
            stamp(9 + stage)
        def hid_load(n):
            kind, stage, k = steps[n]
            if kind == "m":
                i, step = k >> 1, k & 1
                base = S_HDC if (stage == 2 and i == 2) else S_HD + i
                imm = stage*8192 + step*4096
            else:
                dch, s = k >> 2, k & 3; b, part = dch >> 1, dch & 1
                base = S_HDD; imm = (8*b + 4*(s >> 1) + 2*part + (s & 1)) * 4096
            a(f"s_add_u32 s{S_T0}, s{base}, {imm}")
            for tw in range(2):
                vm.op(f"buffer_load_dwordx4 {vr(HB+8*(n%RING)+4*tw,4)}, v{VL16}, {sr(R_WS,4)}, s{S_T0} offen offset:{tw*1024} sc1", f"h{n}")
        def wreads(n):
            n0, n1, pc = groups[grp_of[n]]; kk = n - n0; hi = pc >> 1; po = (pc & 1) * SLOT; ws = WF[n & 1]
            out = []
            if steps[n][0] == "m":
                for dt in range(2):
                    for q in range(2):
                        out.append(f"ds_read_b64_tr_b16 {vr(ws+4*dt+2*q,2)}, v{VT+2*hi+dt} offset:{po+kk*2048+q*1024}")
            else:
                for dt in range(2): out.append(f"ds_read_b128 {vr(ws+4*dt,4)}, v{VC+4*hi+kk} offset:{po+dt*4096}")
            return out
        first = {8: 1, 16: 2, 22: 3}
        pissue = {self.opt.get("pc", 4): 2, self.opt.get("pd", 10): 3}
        refill = {}
        for gi, n_from in ((4, 4), (5, 8), (6, 12), (7, 16), (8, 20), (9, 24)):
            ds = wdmas(gi)
            for k in range(0, len(ds), 2): refill[n_from + k//2] = ds[k:k+2]
        poll_issue(0); poll_check(0)
        poll_issue(1)
        for n in range(DIST): hid_load(n)
        vm.wait("w0")
        for l in wreads(0): a(l)
        N = len(steps)
        for n in range(N):
            vm.wait(f"h{n}")
            if n + 1 < N: vm.wait(f"w{grp_of[n+1]}")
            a("s_waitcnt lgkmcnt(0)")
            nr = wreads(n + 1) if n + 1 < N else []
            dummy = n in (20, 21)
            if dummy:
                for l in nr: a(l)
                nr = []
                a(f"s_cmp_eq_u32 s{u}, 3\ns_cbranch_scc1 L_L_SK{n}")
            for idx, (dt, tw) in enumerate(((0, 0), (0, 1), (1, 0), (1, 1))):
                A = ACC + 32*tw + 16*dt
                a(f"v_mfma_f32_32x32x16_bf16 {vr(A,16)}, {vr(WF[n&1]+4*dt,4)}, {vr(HB+8*(n%RING)+4*tw,4)}, {vr(A,16)}")
                if idx < 2:
                    h = len(nr) // 2
                    for l in nr[idx*h:(idx + 1)*h]: a(l)
            if dummy: a.label(f"L_L_SK{n}")
            m = n + DIST
            if m in first: poll_check(first[m])
            if m < N: hid_load(m)
            if n in pissue: poll_issue(pissue[n])
            for d in refill.get(n, []): dma(*d)
            if n in (7, 15, 21, 29): stamp(25 + (7, 15, 21, 29).index(n))
        stamp(13)
        a("s_nop 7\ns_nop 3")
        for tw in range(2):
            for dt in range(2):
                for jj in range(4):
                    a(f"ds_write_b128 v{VRED}, {vr(ACC+32*tw+16*dt+4*jj,4)} offset:{tw*SLOT+dt*128+jj*32}")
        a("s_waitcnt lgkmcnt(0)")
        stamp(14)
        a("s_barrier")
        self.prof_store()
        a.label("L_END")
        a("s_endpgm")

    def compute(self):
        a = self.a; stamp = self.stamp; horner = self.horner; csq = self.csq; bf16r = self.bf16r
        a.label("L_COMPUTE")
        URE, UIM, AM = 16, 32, [48, 64, 80]
        FS = [108, 132]
        VX, VA, VW = 156, 160, 164
        LAM, LI, COEF, CI, MU, ONES = 96, 98, 100, 102, 168, 174
        SM, SR, SQ = 176, 166, 178
        VL16, VFL, VHH, VE = 180, 181, 182, 183
        T = 184
        S_C, S_DELTA, S_K, S_HO, S_FLO, S_M3 = 84, 85, 86, 88, 89, 92
        vm = VM(a)
        w = S_WAVE
        X0, G0 = 108, 116
        if self.opt.get("ipf", 1):
            a(f"s_getpc_b64 s[90:91]")
            a.label("L_PC")
            a(f"s_lshr_b32 s{S_T0}, s2, 3\ns_lshl_b32 s{S_T0}, s{S_T0}, 2\ns_add_u32 s{S_T0}, s{S_T0}, s{w}\nv_and_b32 v{T+10}, 1, v0\nv_lshl_add_u32 v{T+10}, s{S_T0}, 1, v{T+10}")
            a(f"v_lshlrev_b32 v{T+10}, 7, v{T+10}\nv_min_u32 v{T+10}, L_CODE_END-{KNAME}-4, v{T+10}\ns_sub_u32 s90, s90, L_PC-{KNAME}\ns_subb_u32 s91, s91, 0")
            a(f"v_mov_b32 v{T+11}, s91\nv_add_co_u32 v{T+10}, vcc, s90, v{T+10}\ns_nop 1\nv_addc_co_u32 v{T+11}, vcc, 0, v{T+11}, vcc")
            vm.op(f"global_load_dword v{T+15}, {vr(T+10,2)}, off", "ipf")
        a(f"s_lshl_b32 s{S_T0}, s{S_TT}, 4\ns_add_u32 s{S_T0}, s{S_T0}, s{S_J}\ns_lshl_b32 s{S_T0}, s{S_T0}, 2\ns_add_u32 s{S_T0}, s{S_T0}, s{w}\ns_lshl_b32 s90, s{S_T0}, 5\ns_lshl_b32 s{S_T0}, s{S_T0}, 11")
        a(f"v_lshlrev_b32 v{T+8}, 4, v1\nv_lshl_add_u32 v{T+9}, v2, 10, v{T+8}\ns_lshl_b32 s{S_T1}, s{S_J}, 6\nv_lshl_add_u32 v{T+2}, v1, 1, s{S_T1}")
        self.after_kernarg()
        vm.op(f"buffer_load_dwordx4 {vr(X0,4)}, v{T+9}, {sr(R_X,4)}, s{S_T0} offen", "st")
        vm.op(f"buffer_load_dwordx4 {vr(X0+4,4)}, v{T+9}, {sr(R_X,4)}, s{S_T0} offen offset:512", "st")
        vm.op(f"global_load_dwordx4 {vr(G0,4)}, v{T+8}, {sr(P_GW,2)}", "st")
        vm.op(f"global_load_dwordx4 {vr(G0+4,4)}, v{T+8}, {sr(P_GW,2)} offset:512", "st")
        self.srd_ws()
        a(f"s_lshl_b32 s{S_T0}, s{S_TT}, 7\ns_add_u32 s{S_T0}, s{S_T0}, {WS_WG}\nv_mov_b32 v{T}, 0")
        vm.op(f"buffer_load_dword v{T+1}, v{T}, {sr(R_WS,4)}, s{S_T0} offen sc1", "st")
        vm.op(f"global_load_ushort v{T+4}, v{T+2}, {sr(P_LRE,2)}", "par")
        vm.op(f"global_load_ushort v{T+5}, v{T+2}, {sr(P_LIM,2)}", "par")
        vm.op(f"global_load_ushort v{T+6}, v{T+2}, {sr(P_LDT,2)}", "par")
        a(f"s_sub_u32 s{S_T0}, s{S_NT}, 1\ns_min_u32 s{S_T0}, s{S_T0}, s{w}\ns_add_u32 s{S_T0}, s{S_T0}, s{S_CT0}\ns_lshl_b32 s{S_T0}, s{S_T0}, 6\nv_lshl_add_u32 v{T+3}, v1, 1, s{S_T0}")
        vm.op(f"global_load_ushort v{T+7}, v{T+3}, {sr(P_B1,2)}", "b1")
        stamp(1)
        self.srd(R_OUT, P_OUT, 2048*2048)
        a(f"v_bfe_u32 v{T+8}, v1, 1, 3\nv_lshlrev_b32 v{T+9}, 7, v1")
        a(f"v_bfe_u32 v{T+10}, v0, 2, 2\nv_lshl_add_u32 v{T+10}, v2, 3, v{T+10}\nv_mul_u32_u24 v{T+10}, 192, v{T+10}")
        a(f"v_bfe_u32 v{T+11}, v0, 4, 1\nv_lshl_add_u32 v{T+10}, v{T+11}, 5, v{T+10}\nv_and_b32 v{T+11}, 3, v0\nv_lshl_add_u32 v{T+10}, v{T+11}, 3, v{T+10}")
        a(f"s_lshl_b32 s{S_T2}, s{w}, 12")
        for s in range(4):
            a(f"v_add_u32 v{T+11}, {2*s}, v2\nv_xor_b32 v{T+11}, v{T+11}, v{T+8}\nv_lshl_add_u32 v{VA+s}, v{T+11}, 4, v{T+9}\nv_add_u32 v{VX+s}, s{S_T2}, v{VA+s}")
        a(f"v_add_u32 v{VW}, {L_W1}, v{T+10}")
        for r in range(16, 96, 2): a(f"v_mov_b64 {vr(r,2)}, 0")
        a(f"v_mov_b32 v{ONES}, 0x3f803f80\nv_mov_b32 v{ONES+1}, 0x3f803f80")
        a(f"v_lshlrev_b32 v{VL16}, 4, v0\nv_lshlrev_b32 v{VHH}, 4, v2")
        a(f"v_mov_b32 v{VFL}, {OOB}\nv_cmp_eq_u32 vcc, 0, v0\ns_mov_b32 s{S_K}, {fh(-2.302208198*0.044715)}\ns_mov_b32 s{S_K+1}, {fh(-2.302208198)}\nv_cndmask_b32 v{VFL}, v{VFL}, v0, vcc")
        a(f"s_lshl_b32 s{S_T0}, s{w}, 10\nv_lshl_add_u32 v{VE}, v2, 9, s{S_T0}\nv_lshl_add_u32 v{VE}, v1, 4, v{VE}")
        a(f"s_mul_i32 s{S_HO}, s{S_TT}, {HID_TT}\ns_lshl_b32 s{S_T0}, s{w}, 10\ns_add_u32 s{S_HO}, s{S_HO}, s{S_T0}")
        a(f"s_lshr_b32 s{S_T0}, s{S_J}, 2\ns_lshl_b32 s{S_T1}, s{S_TT}, 2\ns_add_u32 s{S_T0}, s{S_T0}, s{S_T1}\ns_lshl_b32 s{S_T0}, s{S_T0}, 1\ns_lshr_b32 s{S_T1}, s{w}, 1\ns_add_u32 s{S_T0}, s{S_T0}, s{S_T1}\ns_lshl_b32 s{S_FLO}, s{S_T0}, 9")
        a(f"s_and_b32 s{S_T0}, s{S_J}, 3\ns_lshl_b32 s{S_T0}, s{S_T0}, 1\ns_and_b32 s{S_T1}, s{w}, 1\ns_add_u32 s{S_T0}, s{S_T0}, s{S_T1}\ns_lshl_b32 s{S_T0}, s{S_T0}, 2\ns_add_u32 s{S_FLO}, s{S_FLO}, s{S_T0}\ns_add_u32 s{S_FLO}, s{S_FLO}, {WS_FL}")
        vm.wait("st")
        stamp(2)
        self.tag_from(S_TAGG, T+1)
        F, GF, PB = T + 16, T + 32, T + 48
        s1, s2, s3 = T + 12, T + 13, T + 14
        a(f"v_mov_b32 v{s1}, 0\nv_mov_b32 v{s2}, 0\nv_mov_b32 v{s3}, 0")
        for i in range(8):
            a(f"v_lshlrev_b32 v{F+2*i}, 16, v{X0+i}\nv_and_b32 v{F+2*i+1}, 0xffff0000, v{X0+i}\nv_lshlrev_b32 v{GF+2*i}, 16, v{G0+i}\nv_and_b32 v{GF+2*i+1}, 0xffff0000, v{G0+i}")
        for i in range(8): a(f"v_pk_mul_f32 {vr(GF+2*i,2)}, {vr(GF+2*i,2)}, {vr(F+2*i,2)}")
        for i in range(8): a(f"v_cvt_pk_bf16_f32 v{PB+i}, v{GF+2*i}, v{GF+2*i+1}")
        for i in range(8): a(f"v_dot2_f32_bf16 v{s1}, v{X0+i}, v{ONES}, v{s1}\nv_dot2_f32_bf16 v{s3}, v{X0+i}, v{X0+i}, v{s3}\nv_dot2_f32_bf16 v{s2}, v{PB+i}, v{ONES}, v{s2}")
        a("s_nop 0")
        rs = [s1, s3, s2]
        for m in ("quad_perm:[1,0,3,2]", "quad_perm:[2,3,0,1]", "row_half_mirror", "row_mirror"):
            for r in rs:
                if m.startswith("quad_perm:[1") and r != s1: a("s_nop 0")
                a(f"v_add_f32_dpp v{r}, v{r}, v{r} {m} row_mask:0xf bank_mask:0xf")
        for k, r in enumerate(rs): a(f"v_mov_b32 v{PB+k}, v{r}")
        for k, r in enumerate(rs): a(f"v_permlane16_swap_b32 v{r}, v{PB+k}")
        for k, r in enumerate(rs): a(f"v_add_f32 v{r}, v{r}, v{PB+k}")
        GR = T + 16
        a(f"v_mul_f32 v{s1}, {fh(1/512)}, v{s1}\nv_mul_f32 v{s3}, {fh(1/512)}, v{s3}")
        bf16r(s2, s2)
        a(f"v_fma_f32 v{s3}, -v{s1}, v{s1}, v{s3}\nv_mul_f32 v{s2}, {fh(-1.4426950408889634)}, v{s2}\nv_max_f32 v{s3}, 0, v{s3}\nv_exp_f32 v{s2}, v{s2}")
        bf16r(s3, s3); bf16r(GR, s1)
        a(f"v_add_f32 v{s3}, {fh(1e-5)}, v{s3}\nv_add_f32 v{s2}, 1.0, v{s2}")
        bf16r(s3, s3)
        a(f"v_rcp_f32 v{s2}, v{s2}\nv_sqrt_f32 v{s3}, v{s3}")
        bf16r(GR+2, s2); bf16r(s3, s3)
        a(f"v_mov_b32 v{GR+3}, s{S_TAGG}\nv_rcp_f32 v{GR+1}, v{s3}")
        a(f"v_mov_b32 v{s1}, {OOB}\nv_cmp_eq_u32 vcc, 0, v1\nv_lshlrev_b32 v{s2}, 4, v2\ns_add_u32 s90, s90, {WS_ST}\nv_cndmask_b32 v{s1}, v{s1}, v{s2}, vcc")
        vm.op(f"buffer_store_dwordx4 {vr(GR,4)}, v{s1}, {sr(R_WS,4)}, s90 offen sc1", "sts")
        vm.wait("par")
        self.params(T+4, LAM, T+24, COEF)
        csq(MU, LAM, T+24); csq(T+26, MU, T+24); csq(MU, T+26, T+24)
        self.hprep(MU)
        a(f"v_mov_b32 v{LI}, v{LAM+1}\nv_mov_b32 v{CI}, v{COEF+1}")
        vm.wait("b1")
        a(f"s_min_u32 s{S_T0}, s{w}, 2\ns_lshl_b32 s{S_T0}, s{S_T0}, 7\nv_lshl_add_u32 v{T}, v1, 2, s{S_T0}\nv_lshlrev_b32 v{T+7}, 16, v{T+7}")
        a(f"s_cmp_eq_u32 s{w}, 3\ns_cbranch_scc1 L_C_NOB1")
        a(f"v_add_u32 v{T}, {L_CS}, v{T}\nds_write_b32 v{T}, v{T+7} offset:384")
        a.label("L_C_NOB1")
        a(f"s_mov_b32 s{S_C}, 0\ns_mov_b32 s91, {SLOT}\ns_mov_b32 s{S_M3}, 0\ns_waitcnt lgkmcnt(0)")
        stamp(15)
        a("s_barrier")
        stamp(16)

        def rd(set_, s, which):
            F = FS[set_]
            if which == 0: return f"ds_read_b128 {vr(F,4)}, v{VX+s}"
            if which == 1: return f"ds_read_b128 {vr(F+4,4)}, v{VA+s} offset:{L_B}"
            if which == 2: return f"ds_read_b128 {vr(F+8,4)}, v{VA+s} offset:{L_B+4096}"
            ft, q = divmod(which - 3, 2)
            return f"ds_read_b64_tr_b16 {vr(F+12+4*ft+2*q,2)}, v{VW} offset:{s*3072+q*768+ft*64}"
        def mf(set_, i):
            F = FS[set_]
            if i == 0: return f"v_mfma_f32_32x32x16_bf16 {vr(URE,16)}, {vr(F,4)}, {vr(F+4,4)}, {vr(URE,16)}"
            if i == 1: return f"v_mfma_f32_32x32x16_bf16 {vr(UIM,16)}, {vr(F,4)}, {vr(F+8,4)}, {vr(UIM,16)}"
            return f"v_mfma_f32_32x32x16_bf16 {vr(AM[i-2],16)}, {vr(F+12+4*(i-2),4)}, {vr(F,4)}, {vr(AM[i-2],16)}"
        for k in range(9): a(rd(0, 0, k))
        loop0 = len(a.lines)
        a.label("L_C_LOOP")
        for s in range(3):
            cur, nxt = s & 1, (s + 1) & 1
            waits = [7, 8, 8, 8, 8]
            for i in range(5):
                a(f"s_waitcnt lgkmcnt({waits[i]})"); a(mf(cur, i))
                for k in range(2*i, min(2*i + 2, 9)): a(rd(nxt, s + 1, k))
        a("s_waitcnt lgkmcnt(7)"); a(mf(1, 0))
        a(f"s_add_u32 s{S_M3}, s{S_M3}, 1\ns_cmp_eq_u32 s{S_M3}, 3\ns_cselect_b32 s{S_DELTA}, {(-2*SLOT) & 0xffffffff}, s91\ns_cselect_b32 s{S_M3}, 0, s{S_M3}")
        a("s_waitcnt lgkmcnt(6)"); a(mf(1, 1))
        a(f"s_add_u32 s{S_C}, s{S_C}, 1\ns_cmp_eq_u32 s{S_C}, 8\ns_cbranch_scc1 L_C_TAIL")
        a(f"v_add_u32 v{VX}, s{S_DELTA}, v{VX}\nv_add_u32 v{VA}, s{S_DELTA}, v{VA}\nv_add_u32 v{VW}, s{S_DELTA}, v{VW}")
        a("s_waitcnt lgkmcnt(0)\ns_barrier")
        for i in range(2, 5):
            a(mf(1, i))
            for k in range(3*(i-2), 3*(i-2) + 3): a(rd(0, 0, k))
            s = i - 1
            a(f"v_add_u32 v{VX+s}, s{S_DELTA}, v{VX+s}\nv_add_u32 v{VA+s}, s{S_DELTA}, v{VA+s}")
        a("s_branch L_C_LOOP")
        self.loops.append((loop0, len(a.lines)))
        a.label("L_C_TAIL")
        a("s_waitcnt lgkmcnt(0)")
        for i in range(2, 5): a(mf(1, i))
        stamp(3)
        a(f"v_bfe_u32 v{T}, v1, 2, 1\nv_lshlrev_b32 v{T}, 4, v{T}\nv_and_b32 v{T+1}, 1, v1\nv_lshl_add_u32 v{T}, v{T+1}, 3, v{T}")
        a(f"v_lshrrev_b32 v{T+1}, 3, v1\nv_lshl_add_u32 v{T}, v{T+1}, 1, v{T}\nv_bfe_u32 v{T+1}, v1, 1, 1\nv_add_u32 v{T}, v{T}, v{T+1}\nv_lshlrev_b32 v{T}, 4, v{T}")
        a(f"s_lshl_b32 s{S_T0}, s{S_TT}, 2\ns_add_u32 s{S_T0}, s{S_T0}, s{w}\ns_lshl_b32 s{S_T0}, s{S_T0}, 9\ns_add_u32 s90, s{S_T0}, {WS_ST}")
        a(f"s_mul_i32 s{S_T0}, s{w}, {PIECE_U}\ns_add_u32 s{S_T0}, s{S_T0}, {L_ST}\nv_add_u32 v{T+3}, s{S_T0}, v{T}")
        SA, SB = T + 8, T + 12
        cur_re, cur_im = URE, UIM
        dst = SA
        for n in range(1, 8):
            a(f"v_pk_fma_f32 {vr(dst,2)}, {vr(cur_re,2)}, {vr(LAM,2)}, {vr(URE+2*n,2)} op_sel_hi:[1,0,1]")
            a(f"v_pk_fma_f32 {vr(dst+2,2)}, {vr(cur_im,2)}, {vr(LAM,2)}, {vr(UIM+2*n,2)} op_sel_hi:[1,0,1]")
            a(f"v_pk_fma_f32 {vr(dst,2)}, {vr(cur_im,2)}, {vr(LI,2)}, {vr(dst,2)} op_sel_hi:[1,0,1] neg_lo:[0,1,0] neg_hi:[0,1,0]")
            a(f"v_pk_fma_f32 {vr(dst+2,2)}, {vr(cur_re,2)}, {vr(LI,2)}, {vr(dst+2,2)} op_sel_hi:[1,0,1]")
            cur_re, cur_im = dst, dst + 2
            dst = SB if dst == SA else SA
        stamp(23)
        a(f"v_swap_b32 v{cur_re+1}, v{cur_re+2}\nv_add_u32 v{T+1}, {L_E}, v{VE}\nds_write_b128 v{T+1}, {vr(cur_re,4)}")
        a("s_waitcnt lgkmcnt(0)")
        stamp(4)
        a("s_barrier")
        stamp(5)
        TC, TB, O = T + 8, T + 24, T + 40
        def gelu_reads(ft):
            for jj in range(4): a(f"ds_read_b128 {vr(TC+4*jj,4)}, v{T+1} offset:{ft*128+jj*32}")
            for jj in range(4): a(f"ds_read_b128 {vr(TB+4*jj,4)}, v{T+1} offset:{384+ft*128+jj*32}")
        a(f"ds_read_b128 {vr(T+4,4)}, v{T+3}\nv_add_u32 v{T+1}, {L_CS}, v{VHH}")
        gelu_reads(0)
        a(f"s_mov_b32 s{S_T2}, {SPIN}\ns_waitcnt lgkmcnt(8)")
        a.label("L_C_ST")
        a(f"v_cmp_ne_u32 vcc, s{S_TAGG}, v{T+7}\ns_sub_u32 s{S_T2}, s{S_T2}, 1\ns_cmp_eq_u32 s{S_T2}, 0\ns_cbranch_vccz L_C_STOK\ns_cbranch_scc1 L_C_STOK")
        a(f"buffer_load_dwordx4 {vr(T+4,4)}, v{T}, {sr(R_WS,4)}, s90 offen sc1\ns_waitcnt vmcnt(0)\ns_branch L_C_ST")
        a.label("L_C_STOK")
        a(f"v_sub_f32 v{SQ}, 1.0, v{T+6}\nv_sub_f32 v{SM}, 0, v{T+4}\nv_mov_b32 v{SR}, v{T+5}")
        bf16r(SQ, SQ)
        a(f"v_add_f32 v{SQ+1}, v{T+6}, v{T+6}\nv_max_f32 v{SQ}, {fh(1e-30)}, v{SQ}\ns_lshl_b32 s{S_T0}, s{w}, 7\nv_rcp_f32 v{SQ}, v{SQ}")
        a(f"s_add_u32 s{S_T0}, s{S_T0}, {L_G2}\nv_lshl_add_u32 v{T}, v1, 2, s{S_T0}\nds_write_b32 v{T}, v{SQ+1}")
        def gelu(ft):
            A = AM[ft]
            a(f"s_waitcnt lgkmcnt({5 if ft == 0 else 4})")
            for p in range(8): a(f"v_pk_fma_f32 {vr(A+2*p,2)}, {vr(TC+2*p,2)}, {vr(SM,2)}, {vr(A+2*p,2)} op_sel_hi:[1,0,1]")
            a("s_waitcnt lgkmcnt(0)")
            for p in range(8): a(f"v_pk_fma_f32 {vr(A+2*p,2)}, {vr(A+2*p,2)}, {vr(SR,2)}, {vr(TB+2*p,2)} op_sel_hi:[1,0,1]")
            X = T + 48
            for p in range(8): a(f"v_pk_mul_f32 {vr(X+2*p,2)}, {vr(A+2*p,2)}, {vr(A+2*p,2)}")
            if ft < 2: gelu_reads(ft + 1)
            for p in range(8): a(f"v_pk_fma_f32 {vr(X+2*p,2)}, {vr(X+2*p,2)}, {sr(S_K,2)}, {sr(S_K,2)} op_sel:[0,0,1] op_sel_hi:[1,0,1]")
            for p in range(8): a(f"v_pk_mul_f32 {vr(X+2*p,2)}, {vr(X+2*p,2)}, {vr(A+2*p,2)}")
            for r in range(16): a(f"v_exp_f32 v{X+r}, v{X+r}")
            for p in range(8): a(f"v_pk_fma_f32 {vr(X+2*p,2)}, {vr(X+2*p,2)}, {vr(SQ,2)}, {vr(SQ,2)} op_sel_hi:[1,0,0]")
            for r in range(16): a(f"v_rcp_f32 v{X+r}, v{X+r}")
            for p in range(8): a(f"v_pk_mul_f32 {vr(X+2*p,2)}, {vr(X+2*p,2)}, {vr(A+2*p,2)}")
            a(f"s_add_u32 s{S_T0}, s{S_CT0}, {ft}\ns_lshl_b32 s{S_T0}, s{S_T0}, 13\ns_add_u32 s{S_T0}, s{S_T0}, s{S_HO}\ns_add_u32 s{S_T1}, s{S_T0}, 4096")
            for p in range(8): a(f"v_cvt_pk_bf16_f32 v{A+p}, v{X+2*p}, v{X+2*p+1}")
            stamp(17 + ft)
            vm.op(f"buffer_store_dwordx4 {vr(A,4)}, v{VL16}, {sr(R_WS,4)}, s{S_T0} offen sc1", f"st{ft}")
            vm.op(f"buffer_store_dwordx4 {vr(A+4,4)}, v{VL16}, {sr(R_WS,4)}, s{S_T1} offen sc1", f"st{ft}")
        def flag(stage):
            vm.op(f"buffer_store_dword v{T+2}, v{VFL}, {sr(R_WS,4)}, s{S_FLO} offen offset:{stage*128} sc1", "fl")
        a(f"v_mov_b32 v{T+2}, s{S_TAGG}")
        gelu(0)
        stamp(6)
        gelu(1)
        vm.wait("st0"); flag(0)
        stamp(7)
        a(f"s_cmp_eq_u32 s{S_NT}, 2\ns_cbranch_scc1 L_C_NOT2")
        q_save = list(vm.q)
        gelu(2)
        vm.wait("st1"); flag(1)
        a("s_branch L_C_T2DONE")
        a.label("L_C_NOT2")
        q_a = list(vm.q); vm.q = q_save
        a("s_waitcnt lgkmcnt(0)")
        vm.wait("st1"); flag(1)
        a.label("L_C_T2DONE")
        vm.q = q_a
        stamp(8)
        a("s_waitcnt lgkmcnt(0)\ns_barrier")
        stamp(9)
        RA, RB, EE, G2 = T + 4, T + 6, T + 8, T + 24
        a(f"v_lshlrev_b32 v{T}, 3, v1\nv_add_u32 v{T}, {L_H}, v{T}\nds_read_b64 {vr(RA,2)}, v{T}")
        a(f"v_lshlrev_b32 v{T}, 4, v1\nv_add_u32 v{T}, {L_E}, v{T}\ns_mov_b32 s{S_T2}, s{w}")
        a(f"s_lshl_b32 s{S_T0}, s{w}, 7\ns_add_u32 s{S_T0}, s{S_T0}, {L_G2}\nv_add_u32 v{T+1}, s{S_T0}, v{VHH}")
        for jj in range(4): a(f"ds_read_b128 {vr(G2+4*jj,4)}, v{T+1} offset:{jj*32}")
        a.label("L_C_HL")
        a(f"ds_read_b128 {vr(EE,4)}, v{T}\nds_read_b128 {vr(EE+4,4)}, v{T} offset:512\nv_add_u32 v{T}, 1024, v{T}\ns_cmp_eq_u32 s{S_T2}, 0\ns_waitcnt lgkmcnt(0)\ns_cbranch_scc1 L_C_HD")
        horner(RA, MU, EE, RB); horner(RB, MU, EE+2, RA); horner(RA, MU, EE+4, RB); horner(RB, MU, EE+6, RA)
        a(f"s_sub_u32 s{S_T2}, s{S_T2}, 1\ns_branch L_C_HL")
        a.label("L_C_HD")
        R2, R3, CC = T + 16, T + 18, T + 20
        horner(RA, MU, EE, RB); horner(RB, MU, EE+2, R2); horner(R2, MU, EE+4, R3)
        a(f"v_cmp_eq_u32 vcc, 1, v2")
        vm.wait("st2"); flag(2)
        stamp(20)
        a(f"v_cndmask_b32 v{CC}, v{RA}, v{R2}, vcc\nv_cndmask_b32 v{CC+1}, v{RB}, v{R3}, vcc\nv_cndmask_b32 v{CC+2}, v{RA+1}, v{R2+1}, vcc\nv_cndmask_b32 v{CC+3}, v{RB+1}, v{R3+1}, vcc")
        PRE, PIM, OR, OI = T + 40, T + 48, T + 56, T + 58
        cur_re, cur_im = CC, CC + 2
        def post(n):
            u, v = URE + 2*n, UIM + 2*n
            a(f"v_pk_mul_f32 {vr(OR,2)}, {vr(u,2)}, {vr(COEF,2)} op_sel_hi:[1,0]")
            a(f"v_pk_mul_f32 {vr(OI,2)}, {vr(v,2)}, {vr(COEF,2)} op_sel_hi:[1,0] neg_lo:[0,1] neg_hi:[0,1]")
            a(f"v_pk_fma_f32 {vr(OR,2)}, {vr(v,2)}, {vr(CI,2)}, {vr(OR,2)} op_sel_hi:[1,0,1] neg_lo:[0,1,0] neg_hi:[0,1,0]")
            a(f"v_pk_fma_f32 {vr(OI,2)}, {vr(u,2)}, {vr(CI,2)}, {vr(OI,2)} op_sel_hi:[1,0,1] neg_lo:[0,1,0] neg_hi:[0,1,0]")
            a(f"v_pk_mul_f32 {vr(OR,2)}, {vr(OR,2)}, {vr(G2+2*n,2)}\nv_pk_mul_f32 {vr(OI,2)}, {vr(OI,2)}, {vr(G2+2*n,2)}")
            a(f"v_cvt_pk_bf16_f32 v{PRE+n}, v{OR}, v{OR+1}\nv_cvt_pk_bf16_f32 v{PIM+n}, v{OI}, v{OI+1}")
        for n in range(8):
            u, v = URE + 2*n, UIM + 2*n
            a(f"v_pk_fma_f32 {vr(u,2)}, {vr(cur_re,2)}, {vr(LAM,2)}, {vr(u,2)} op_sel_hi:[1,0,1]")
            a(f"v_pk_fma_f32 {vr(v,2)}, {vr(cur_im,2)}, {vr(LAM,2)}, {vr(v,2)} op_sel_hi:[1,0,1]")
            a(f"v_pk_fma_f32 {vr(u,2)}, {vr(cur_im,2)}, {vr(LI,2)}, {vr(u,2)} op_sel_hi:[1,0,1] neg_lo:[0,1,0] neg_hi:[0,1,0]")
            a(f"v_pk_fma_f32 {vr(v,2)}, {vr(cur_re,2)}, {vr(LI,2)}, {vr(v,2)} op_sel_hi:[1,0,1]")
            cur_re, cur_im = u, v
            if n > 0: post(n - 1)
        post(7)
        a(f"s_mul_i32 s{S_T0}, s{w}, 2560\ns_add_u32 s{S_T0}, s{S_T0}, {L_TR}\nv_mul_u32_u24 v{T}, 80, v1\nv_lshl_add_u32 v{T}, v2, 5, v{T}\nv_add_u32 v{T}, s{S_T0}, v{T}")
        a(f"v_bfe_u32 v{T+1}, v0, 2, 2\nv_lshl_add_u32 v{T+1}, v2, 3, v{T+1}\nv_mul_u32_u24 v{T+1}, 80, v{T+1}\nv_and_b32 v{T+3}, 1, v0\nv_lshl_add_u32 v{T+1}, v{T+3}, 5, v{T+1}")
        a(f"v_bfe_u32 v{T+3}, v0, 4, 1\nv_lshl_add_u32 v{T+1}, v{T+3}, 4, v{T+1}\nv_bfe_u32 v{T+3}, v0, 1, 1\nv_lshl_add_u32 v{T+1}, v{T+3}, 3, v{T+1}\nv_add_u32 v{T+1}, s{S_T0}, v{T+1}")
        HF = 16
        for part, PK in enumerate((PRE, PIM)):
            a(f"ds_write_b128 v{T}, {vr(PK,4)}\nds_write_b128 v{T}, {vr(PK+4,4)} offset:16")
            for sp in range(2):
                for q in range(2):
                    a(f"ds_read_b64_tr_b16 {vr(HF+8*part+4*sp+2*q,2)}, v{T+1} offset:{(16*sp+4*q)*80}")
        a(f"s_lshl_b32 s{S_T0}, s{S_J}, 14\ns_add_u32 s{S_T0}, s{S_T0}, s{S_HO}\ns_add_u32 s{S_T0}, s{S_T0}, {86*4096}")
        for k in range(4):
            a(f"s_waitcnt lgkmcnt({[8,6,2,0][k]})")
            vm.op(f"buffer_store_dwordx4 {vr(HF+4*k,4)}, v{VL16}, {sr(R_WS,4)}, s{S_T0} offen sc1", "st3")
            if k < 3: a(f"s_add_u32 s{S_T0}, s{S_T0}, 4096")
        stamp(10)
        vm.wait("st3"); flag(3)
        stamp(11)
        XV, DK, B2, GV, TM = 32, 40, 42, 44, 48
        VROW, VRD = T, T + 1
        a(f"v_lshrrev_b32 v{T+3}, 4, v0\nv_and_b32 v{T+4}, 1, v{T+3}\nv_lshlrev_b32 v{T+4}, 3, v{T+4}\nv_lshrrev_b32 v{T+5}, 1, v{T+3}\nv_add_u32 v{VROW}, v{T+4}, v{T+5}\nv_and_b32 v{T+6}, 15, v0")
        a(f"s_lshl_b32 s90, s{S_TT}, 7\ns_lshl_b32 s{S_T0}, s{S_TH}, 6\ns_add_u32 s90, s90, s{S_T0}\ns_lshr_b32 s{S_T0}, s{w}, 1\ns_lshl_b32 s{S_T0}, s{S_T0}, 5\ns_add_u32 s90, s90, s{S_T0}\ns_and_b32 s{S_T0}, s{w}, 1\ns_lshl_b32 s{S_T0}, s{S_T0}, 2\ns_add_u32 s90, s90, s{S_T0}")
        a(f"s_lshl_b32 s91, s90, 10\ns_lshl_b32 s{S_T0}, s{S_DN}, 7\ns_add_u32 s91, s91, s{S_T0}\nv_lshlrev_b32 v{T+4}, 10, v{VROW}\nv_lshl_add_u32 v{T+4}, v{T+6}, 3, v{T+4}\nv_lshl_add_u32 v{T+5}, v{T+6}, 3, s{S_T0}")
        roff = [16*(i & 1) + 2*(i >> 1) for i in range(4)]
        for i in range(4):
            a(f"s_add_u32 s{S_T1}, s91, {roff[i]*1024}")
            vm.op(f"buffer_load_dwordx2 {vr(XV+2*i,2)}, v{T+4}, {sr(R_X,4)}, s{S_T1} offen", "ep")
        vm.op(f"global_load_dwordx2 {vr(DK,2)}, v{T+5}, {sr(P_DSK,2)}", "ep")
        vm.op(f"global_load_dwordx2 {vr(B2,2)}, v{T+5}, {sr(P_B2,2)}", "ep")
        a(f"s_lshl_b32 s{S_T0}, s{S_TH}, 2\ns_add_u32 s{S_T0}, s{S_T0}, s{w}\ns_lshl_b32 s{S_T0}, s{S_T0}, 6\ns_add_u32 s{S_T0}, s{S_T0}, {L_G2}\nv_lshl_add_u32 v{T+7}, v{T+3}, 2, s{S_T0}")
        for i in range(4): a(f"ds_read_b32 v{GV+i}, v{T+7} offset:{i*16}")
        a(f"s_lshr_b32 s{S_T0}, s{w}, 1\ns_mul_i32 s{S_T0}, s{S_T0}, {SLOT}\ns_and_b32 s{S_T1}, s{w}, 1\ns_mul_i32 s{S_T1}, s{S_T1}, {16*272}\ns_add_u32 s{S_T0}, s{S_T0}, s{S_T1}")
        a(f"v_mul_u32_u24 v{VRD}, 272, v{T+3}\nv_lshl_add_u32 v{VRD}, v{T+6}, 4, v{VRD}\nv_add_u32 v{VRD}, s{S_T0}, v{VRD}")
        a(f"v_lshlrev_b32 v{VROW}, 11, v{VROW}\nv_lshl_add_u32 v{VROW}, v{T+6}, 4, v{VROW}\ns_lshl_b32 s90, s90, 11\ns_lshl_b32 s{S_T0}, s{S_DN}, 8\ns_add_u32 s90, s90, s{S_T0}")
        vm.wait("ep")
        a("s_waitcnt lgkmcnt(0)")
        DF, BF, XF = T + 8, T + 12, T + 16
        for k in range(2):
            a(f"v_lshlrev_b32 v{DF+2*k}, 16, v{DK+k}\nv_and_b32 v{DF+2*k+1}, 0xffff0000, v{DK+k}\nv_lshlrev_b32 v{BF+2*k}, 16, v{B2+k}\nv_and_b32 v{BF+2*k+1}, 0xffff0000, v{B2+k}")
        for i in range(4):
            g, om = T + 20, T + 21
            a(f"v_mul_f32 v{g}, 0.5, v{GV+i}\nv_sub_f32 v{om}, 1.0, v{g}")
            bf16r(om, om)
            for k in range(2):
                a(f"v_lshlrev_b32 v{XF+2*k}, 16, v{XV+2*i+k}\nv_and_b32 v{XF+2*k+1}, 0xffff0000, v{XV+2*i+k}")
                a(f"v_mul_f32 v{XF+2*k}, v{XF+2*k}, v{DF+2*k}\nv_mul_f32 v{XF+2*k+1}, v{XF+2*k+1}, v{DF+2*k+1}\nv_cvt_pk_bf16_f32 v{T+22}, v{XF+2*k}, v{XF+2*k+1}")
                a(f"v_lshlrev_b32 v{XF+2*k}, 16, v{T+22}\nv_and_b32 v{XF+2*k+1}, 0xffff0000, v{T+22}")
                for z in range(2):
                    a(f"v_mul_f32 v{TM+4*i+2*k+z}, v{BF+2*k+z}, v{om}\nv_fmac_f32 v{TM+4*i+2*k+z}, v{XF+2*k+z}, v{g}")
        stamp(12)
        a("s_barrier")
        stamp(13)
        PT = 64
        for i in range(4):
            for u in range(4): a(f"ds_read_b128 {vr(PT+16*i+4*u,4)}, v{VRD} offset:{u*PIECE_U+i*4*272}")
        for i in range(4):
            a(f"s_waitcnt lgkmcnt({12-4*i})")
            for u in range(4):
                for k in range(2): a(f"v_pk_add_f32 {vr(TM+4*i+2*k,2)}, {vr(TM+4*i+2*k,2)}, {vr(PT+16*i+4*u+2*k,2)}")
            a(f"s_add_u32 s{S_T1}, s90, {roff[i]*2048}")
            vm.op(f"buffer_store_dwordx4 {vr(TM+4*i,4)}, v{VROW}, {sr(R_OUT,4)}, s{S_T1} offen", "out")
        a(f"s_or_b32 s{S_T0}, s{S_J}, s{w}\ns_cmp_lg_u32 s{S_T0}, 0\ns_cbranch_scc1 L_C_DONE\ns_lshl_b32 s{S_T0}, s{S_TT}, 7\ns_add_u32 s{S_T0}, s{S_T0}, {WS_WG}")
        a(f"buffer_store_dword v{T+2}, v{VFL}, {sr(R_WS,4)}, s{S_T0} offen sc1")
        a.label("L_C_DONE")
        if self.prof:
            a("s_waitcnt vmcnt(0)"); stamp(14)
            a("s_memrealtime s[100:101]\ns_waitcnt lgkmcnt(0)\nv_writelane_b32 v3, s100, 62")
            self.prof_store()
        a("s_endpgm")
        a.label("L_CODE_END")

    def build(self):
        self.common(); self.loader(); self.compute()
        a = self.a
        msgs = check_hazards(a.lines, "linear")
        for l0, l1 in self.loops: msgs += check_hazards(a.lines[l0:l1] + a.lines[l0:l1], "loop")
        for m in msgs: print("HAZARD", m, file=sys.stderr)
        hdr = open("gated_mix__ssm_conv_s5__mixer_channel_mlp__prompt.s.ref").read().split("; Override")[0]
        out = hdr + "; Override launch geometry by editing the next line (default: block=256,\n; grid=ceil(out_elems/256), lds=0). Harness parses it; keep it on one line.\n"
        out += "; @launch grid=(256,1,1) block=(512,1,1) lds=163840\n"
        out += f'.amdgcn_target "amdgcn-amd-amdhsa--gfx950"\n.text\n.globl {KNAME}\n.p2align 8\n.type {KNAME},@function\n{KNAME}:\n'
        out += a.text()
        out += f""".section .rodata,"a"
.p2align 6
.amdhsa_kernel {KNAME}
  .amdhsa_next_free_vgpr 256
  .amdhsa_next_free_sgpr 102
  .amdhsa_accum_offset 256
  .amdhsa_group_segment_fixed_size 0
  .amdhsa_kernarg_size 144
  .amdhsa_user_sgpr_count 2
  .amdhsa_user_sgpr_kernarg_segment_ptr 1
  .amdhsa_system_sgpr_workgroup_id_x 1
.end_amdhsa_kernel
"""
        return out

if __name__ == "__main__":
    prof = "--prof" in sys.argv
    opt = {}
    for x in sys.argv[1:]:
        if x.startswith("--") and "=" in x:
            k, v = x[2:].split("="); opt[k] = int(v)
    out = [x for x in sys.argv[1:] if not x.startswith("--")]
    open(out[0], "w").write(G(prof, **opt).build())
```

```python
import sys, struct
from asmlib import *

KNAME = "gated_mix__ssm_conv_s5__mixer_channel_mlp__prompt_kernel"
def f2u(x): return struct.unpack("<I", struct.pack("<f", x))[0]
def fh(x): return "0x%08x" % f2u(x)

WS_HID = 0; HID_TT = 150*4096
WS_ST = 0xA00000; WS_SG = 0xA10000; WS_FL = 0xA40000; WS_WG = 0xA60000; WS_WC = 0xA61000; WS_USED = 0xA70000
WS_PROF = 0xB00000
SLOT = 36864; L_B = 16384; L_W1 = 24576; PIECE_U = 9216
L_E = 147456; L_CS = L_E + 4096; L_B1 = L_CS + 384; L_G2 = L_B1 + 384; L_H = L_G2 + 512; L_TR = L_H + 256
L_HF = L_TR + 4*2560
TRW = 2560
L_ST = L_TR
L_PW = L_TR + 512
assert L_HF + 16 <= 163840
OOB = 0x7ff00000
SPIN = 200000
S_WAVE, S_TT, S_J, S_U, S_TH, S_DN, S_CT0, S_NT, S_TAGG, S_TAGC = 3, 4, 5, 6, 7, 8, 9, 10, 11, 12
S_T0, S_T1, S_T2 = 13, 14, 15
P_X, P_LRE, P_LIM, P_BRE, P_BIM, P_CRE, P_CIM, P_LDT, P_DSK, P_BX, P_W1, P_B1, P_W2, P_B2, P_GW, P_OUT, P_DBG, P_WS = range(16, 52, 2)
R_X, R_B, R_W1, R_W2, R_CRE, R_CIM, R_WS, R_OUT = range(52, 84, 4)

class VM:
    def __init__(self, a): self.a = a; self.q = []; self.thr = None
    def op(self, text, tag=None):
        if self.thr is not None and len(self.q) > self.thr:
            self.a(f"s_waitcnt vmcnt({self.thr})"); self.q = self.q[len(self.q) - self.thr:]
        self.a(text); self.q.append(tag)
    def wait(self, tag):
        idx = [i for i, t in enumerate(self.q) if t == tag]
        if not idx: return
        n = len(self.q) - 1 - idx[-1]
        assert n <= 63, (tag, n)
        self.a(f"s_waitcnt vmcnt({n})"); self.q = self.q[idx[-1] + 1:]
    def drain(self): self.a("s_waitcnt vmcnt(0)"); self.q = []

class G:
    def __init__(self, prof=False, **opt):
        self.a = Asm(); self.prof = prof; self.opt = opt; self.loops = []
    def opt_s(self, k, d):
        v = self.opt.get(k)
        return d if v is None else {0: "", 1: "sc1", 2: "sc0 sc1", 3: "nt", 4: "sc1 nt", 5: "sc0"}[v]
    def stamp(self, idx):
        if self.prof: self.a(f"s_memtime s[100:101]\ns_waitcnt lgkmcnt(0)\nv_writelane_b32 v3, s100, {idx}")
    def prof_store(self):
        if self.prof:
            self.a(f"s_lshl_b32 s{S_T0}, s2, 3\ns_add_u32 s{S_T0}, s{S_T0}, s{S_WAVE}\ns_lshl_b32 s{S_T0}, s{S_T0}, 8\ns_add_u32 s{S_T0}, s{S_T0}, {WS_PROF}\nv_lshlrev_b32 v4, 2, v0\nbuffer_store_dword v3, v4, {sr(R_WS,4)}, s{S_T0} offen")
    def srd_ws(self):
        off = self.opt.get("wsoff", 0) << 20
        if off: self.a(f"s_add_u32 s{P_WS}, s{P_WS}, {off}\ns_addc_u32 s{P_WS+1}, s{P_WS+1}, 0")
        self.srd(R_WS, P_WS, WS_USED if not self.prof else 0xC00000)
    def srd(self, r, p, size):
        self.a(f"s_mov_b32 s{r}, s{p}\ns_mov_b32 s{r+1}, s{p+1}\ns_mov_b32 s{r+2}, {size}\ns_mov_b32 s{r+3}, 0x20000")
    def bf16r(self, d, s):
        self.a(f"v_cvt_pk_bf16_f32 v{d}, v{s}, v{s}\nv_and_b32 v{d}, 0xffff0000, v{d}")
    def csq(self, d, s, t):
        self.a(f"v_mul_f32 v{t}, v{s+1}, v{s+1}\nv_mul_f32 v{t+1}, v{s}, v{s+1}\nv_fma_f32 v{d}, v{s}, v{s}, -v{t}\nv_add_f32 v{d+1}, v{t+1}, v{t+1}")
    def horner(self, r, mu, e, rn):
        self.a(f"v_pk_fma_f32 {vr(rn,2)}, {vr(r,2)}, {vr(mu,2)}, {vr(e,2)} op_sel_hi:[1,0,1]")
        self.a(f"v_pk_fma_f32 {vr(rn,2)}, {vr(r,2)}, {vr(mu+2,2)}, {vr(rn,2)} op_sel:[1,0,0] op_sel_hi:[0,1,1]")
    def hprep(self, mu):
        self.a(f"v_sub_f32 v{mu+2}, 0, v{mu+1}\nv_mov_b32 v{mu+3}, v{mu+1}")
    def params(self, vin, LAM, T, COEF=None):
        a = self.a
        A_, B_, D_ = vin, vin + 1, vin + 2
        a(f"v_lshlrev_b32 v{D_}, 16, v{D_}\nv_lshlrev_b32 v{A_}, 16, v{A_}\nv_mul_f32 v{D_}, {fh(1.4426950408889634)}, v{D_}\nv_lshlrev_b32 v{B_}, 16, v{B_}")
        a(f"v_exp_f32 v{D_}, v{D_}\ns_nop 0")
        self.bf16r(D_, D_)
        a(f"v_mul_f32 v{T}, v{D_}, v{A_}\nv_mul_f32 v{T+1}, v{D_}, v{B_}")
        a(f"v_mul_f32 v{T}, {fh(1.4426950408889634)}, v{T}\nv_mul_f32 v{T+1}, 0.15915494, v{T+1}")
        a(f"v_exp_f32 v{T}, v{T}\nv_fract_f32 v{T+1}, v{T+1}\ns_nop 0\nv_cos_f32 v{T+2}, v{T+1}\nv_sin_f32 v{T+3}, v{T+1}\ns_nop 0")
        a(f"v_mul_f32 v{LAM}, v{T}, v{T+2}\nv_mul_f32 v{LAM+1}, v{T}, v{T+3}")
        if COEF is not None:
            a(f"v_mul_f32 v{T+4}, v{A_}, v{A_}\nv_add_f32 v{T}, -1.0, v{LAM}\nv_fmac_f32 v{T+4}, v{B_}, v{B_}")
            a(f"v_mul_f32 v{T+1}, v{T}, v{A_}\nv_rcp_f32 v{T+4}, v{T+4}\nv_mul_f32 v{T+2}, v{LAM+1}, v{A_}")
            a(f"v_fmac_f32 v{T+1}, v{LAM+1}, v{B_}\nv_fma_f32 v{T+2}, -v{T}, v{B_}, v{T+2}")
            a(f"v_mul_f32 v{COEF}, v{T+1}, v{T+4}\nv_mul_f32 v{COEF+1}, v{T+2}, v{T+4}")
    def tag_from(self, sd, v):
        self.a(f"v_readfirstlane_b32 s{sd}, v{v}\ns_nop 0\ns_mul_i32 s{sd}, s{sd}, 0x9e3779b1\ns_add_u32 s{sd}, s{sd}, 0x7f4a7c15")

    def common(self):
        a = self.a
        a(f"s_cmp_ge_u32 s2, 256\ns_cbranch_scc1 L_END")
        a("s_load_dwordx16 s[16:31], s[0:1], 0\ns_load_dwordx16 s[32:47], s[0:1], 64\ns_load_dwordx4 s[48:51], s[0:1], 128")
        if self.prof:
            a("v_mov_b32 v3, 0\ns_memrealtime s[98:99]\ns_memtime s[100:101]")
        a(f"v_lshrrev_b32 v1, 6, v0\nv_and_b32 v0, 63, v0\ns_lshr_b32 s{S_T1}, s2, 3\nv_readfirstlane_b32 s{S_WAVE}, v1")
        a(f"s_and_b32 s{S_J}, s{S_T1}, 7\ns_and_b32 s{S_T0}, s2, 1\ns_lshl_b32 s{S_T0}, s{S_T0}, 3\ns_add_u32 s{S_J}, s{S_J}, s{S_T0}")
        a(f"s_lshr_b32 s{S_T1}, s{S_T1}, 3\ns_and_b32 s{S_T0}, s2, 6\ns_lshl_b32 s{S_T0}, s{S_T0}, 1\ns_add_u32 s{S_TT}, s{S_T0}, s{S_T1}")
        a(f"s_and_b32 s{S_U}, s{S_WAVE}, 3\ns_bfe_u32 s{S_TH}, s{S_J}, 0x10002\ns_lshr_b32 s{S_DN}, s{S_J}, 3\ns_lshl_b32 s{S_DN}, s{S_DN}, 2\ns_and_b32 s{S_T1}, s{S_J}, 3\ns_add_u32 s{S_DN}, s{S_DN}, s{S_T1}")
        a(f"s_lshr_b32 s{S_T0}, s{S_J}, 2\ns_mul_i32 s{S_T0}, s{S_T0}, 11\ns_mul_i32 s{S_CT0}, s{S_T1}, 3\ns_add_u32 s{S_CT0}, s{S_CT0}, s{S_T0}\ns_min_u32 s{S_CT0}, s{S_CT0}, 41")
        a(f"s_cmp_eq_u32 s{S_T1}, 3\ns_cselect_b32 s{S_NT}, 2, 3\ns_cmp_eq_u32 s{S_J}, 14\ns_cselect_b32 s{S_NT}, 2, s{S_NT}")
        a("v_and_b32 v1, 31, v0\nv_lshrrev_b32 v2, 5, v0")
        a(f"s_cmp_lt_u32 s{S_WAVE}, 4\ns_cbranch_scc1 L_COMPUTE")
    def after_kernarg(self):
        a = self.a
        a("s_waitcnt lgkmcnt(0)")
        if self.prof: a("v_writelane_b32 v3, s98, 63\nv_writelane_b32 v3, s100, 0")
        self.srd(R_X, P_X, 2048*1024)

    def loader(self):
        a = self.a; stamp = self.stamp; horner = self.horner
        vm = VM(a)
        u = S_U
        DX, DB, DW, DW2, DPF, DUM = 4, 6, 8, 11, 9, 44
        VT, VC, VL16, VPOLL, VRED, VPR = 12, 16, 24, 25, 26, 27
        ONES, VCS = 28, 30
        MUL, NU, NU8 = 32, 36, 40
        WQ = 48; ACC = 112; HB = 176
        S_XO, S_BO, S_WO, S_M0X, S_M0B, S_M0W, S_WO2 = 84, 85, 86, 87, 88, 89, 12
        T = 176
        t_, p_ = T + 5, T + 6
        a(f"v_lshrrev_b32 v{t_}, 3, v0\nv_and_b32 v{p_}, 7, v0\nv_lshrrev_b32 v{T+7}, 1, v{t_}\nv_xor_b32 v{T+7}, v{T+7}, v{p_}\nv_lshlrev_b32 v{T+7}, 4, v{T+7}")
        a(f"v_lshrrev_b32 v{DX}, 2, v{t_}\nv_lshlrev_b32 v{DX}, 4, v{DX}\nv_and_b32 v{DX+1}, 1, v{t_}\nv_lshl_add_u32 v{DX}, v{DX+1}, 3, v{DX}\nv_bfe_u32 v{DW2}, v{t_}, 1, 1\nv_add_u32 v{DX}, v{DX}, v{DW2}")
        a(f"v_lshl_add_u32 v{DX}, v{DX}, 10, v{T+7}\nv_xor_b32 v{DX+1}, 64, v{DX}")
        a(f"s_lshl_b32 s{S_XO}, s{S_TT}, 2\ns_add_u32 s{S_XO}, s{S_XO}, s{u}\ns_lshl_b32 s{S_XO}, s{S_XO}, 15\ns_lshl_b32 s{S_M0X}, s{u}, 12")
        a(f"v_lshl_add_u32 v{DB}, v{t_}, 10, v{T+7}\nv_xor_b32 v{DB+1}, 64, v{DB}")
        a(f"s_lshl_b32 s{S_BO}, s{S_J}, 1\ns_and_b32 s{S_T0}, s{u}, 1\ns_add_u32 s{S_BO}, s{S_BO}, s{S_T0}\ns_lshl_b32 s{S_BO}, s{S_BO}, 14\ns_lshl_b32 s{S_M0B}, s{u}, 11")
        a(f"v_lshrrev_b32 v{DW}, 2, v0\nv_mul_u32_u24 v{DW}, 2752, v{DW}\nv_and_b32 v{T+7}, 3, v0\nv_lshl_add_u32 v{DW}, v{T+7}, 4, v{DW}")
        a(f"s_mul_i32 s{S_WO}, s{u}, {16*2752}\ns_lshl_b32 s{S_T1}, s{S_CT0}, 6\ns_add_u32 s{S_WO}, s{S_WO}, s{S_T1}\ns_mul_i32 s{S_M0W}, s{u}, 3072")
        a(f"s_lshl_b32 s{S_T1}, s{S_NT}, 6\ns_add_u32 s{S_WO2}, s{S_WO}, s{S_T1}\ns_sub_u32 s{S_WO2}, s{S_WO2}, 64")
        self.after_kernarg()
        def dma(m0base, m0imm, sob, soimm, vaddr, rs, tag, fl=""):
            if m0base is None:
                a(f"s_add_u32 s{S_T0}, s{sob}, {soimm}")
                vm.op(f"buffer_load_dwordx4 {vr(DUM,4)}, v{vaddr}, {sr(rs,4)}, s{S_T0} offen", tag); return
            a(f"s_add_u32 m0, s{m0base}, {m0imm}\ns_add_u32 s{S_T0}, s{sob}, {soimm}")
            vm.op(f"buffer_load_dwordx4 v{vaddr}, {sr(rs,4)}, s{S_T0} offen {fl} lds", tag)
        def chunk(c):
            sl = (c % 4) * SLOT
            out = [(S_M0X, sl + 1024*i, S_XO, 2048*i + 128*c, DX + (i & 1), R_X, f"c{c}") for i in range(4)]
            out += [(S_M0B, sl + L_B + 1024*i, S_BO, 8192*i + 128*c, DB + i, R_B, f"c{c}") for i in range(2)]
            out += [(S_M0W, sl + L_W1 + 1024*n, S_WO2 if n == 2 else S_WO, 64*2752*c + (64*n if n < 2 else 0), DW, R_W1, f"c{c}") for n in range(3)]
            return out
        c0 = chunk(0)
        for d in c0[:4]: dma(*d)
        a(f"s_cmp_ge_u32 s{u}, 2\ns_cselect_b32 s{R_B}, s{P_BIM}, s{P_BRE}\ns_cselect_b32 s{R_B+1}, s{P_BIM+1}, s{P_BRE+1}\ns_mov_b32 s{R_B+2}, {512*1024}\ns_mov_b32 s{R_B+3}, 0x20000")
        for d in c0[4:6]: dma(*d)
        self.srd(R_W1, P_W1, 512*2752)
        for d in c0[6:] + chunk(1)[:3]: dma(*d)
        stamp(1)
        S_PU, S_W2, S_HD, S_W2C, S_HDC, S_HDD, S_CO, S_FP = 90, 91, 95, 99, 84, 85, 86, 87
        S_PFW, S_PFC = 16, 17
        CA, CF = 208, 192
        a(f"v_lshlrev_b32 v{DW2}, 2, v{DW2}\nv_xor_b32 v{DW2}, v{DW2}, v{p_}\nv_lshlrev_b32 v{DW2}, 4, v{DW2}\nv_lshl_add_u32 v{DW2}, v{t_}, 10, v{DW2}")
        a(f"v_bfe_u32 v{T}, v0, 2, 2\nv_bfe_u32 v{T+2}, v0, 4, 1\nv_and_b32 v{T+3}, 3, v0\nv_lshlrev_b32 v{T+3}, 3, v{T+3}\nv_lshl_add_u32 v{T+3}, v{T+2}, 5, v{T+3}")
        a(f"v_lshl_add_u32 v{VCS}, v2, 3, v{T}\nv_lshlrev_b32 v{VCS}, 6, v{VCS}\ns_lshl_b32 s{S_T0}, s{u}, 10\ns_add_u32 s{S_T0}, s{S_T0}, {L_W1}\nv_add3_u32 v{VCS}, v{VCS}, v{T+3}, s{S_T0}\nv_add_u32 v{VCS+1}, {2*SLOT}, v{VCS}")
        a(f"v_mov_b32 v{ONES}, 0x3f803f80\nv_mov_b32 v{ONES+1}, 0x3f803f80")
        for r in range(CA, CA + 16, 2): a(f"v_mov_b64 {vr(r,2)}, 0")
        self.srd_ws(); self.srd(R_W2, P_W2, 1376*1024); self.srd(R_CRE, P_CRE, 512*1024); self.srd(R_CIM, P_CIM, 512*1024)
        a(f"s_mul_i32 s{S_PU}, s{u}, {PIECE_U}")
        a(f"v_lshl_add_u32 v{T+1}, v2, 2, v{T}\nv_lshl_add_u32 v{T+1}, v{T+1}, 7, v{T+3}\nv_lshrrev_b32 v{T}, 1, v{T}\nv_lshl_add_u32 v{T+1}, v{T}, 6, v{T+1}\nv_xor_b32 v{T+2}, 64, v{T+1}")
        a(f"v_add_u32 v{VT}, s{S_PU}, v{T+1}\nv_add_u32 v{VT+1}, s{S_PU}, v{T+2}\nv_add_u32 v{VT+2}, {2*SLOT}, v{VT}\nv_add_u32 v{VT+3}, {2*SLOT}, v{VT+1}")
        a(f"v_bfe_u32 v{T}, v1, 1, 3\nv_lshl_add_u32 v{T+1}, v1, 7, s{S_PU}")
        for s in range(4):
            a(f"v_add_u32 v{T+2}, {2*s}, v2\nv_xor_b32 v{T+2}, v{T+2}, v{T}\nv_lshl_add_u32 v{VC+s}, v{T+2}, 4, v{T+1}\nv_add_u32 v{VC+4+s}, {2*SLOT}, v{VC+s}")
        a(f"v_lshlrev_b32 v{VL16}, 4, v0\nv_lshlrev_b32 v{DPF}, 4, v1\nv_lshl_add_u32 v{DPF}, v2, 10, v{DPF}")
        a(f"v_mul_u32_u24 v{VRED}, 272, v1\nv_lshl_add_u32 v{VRED}, v2, 4, v{VRED}\nv_add_u32 v{VRED}, s{S_PU}, v{VRED}")
        a(f"s_mul_i32 s{S_T1}, s{S_TT}, {HID_TT}\ns_lshl_b32 s{S_T0}, s{S_TH}, 11\ns_add_u32 s{S_T1}, s{S_T1}, s{S_T0}\ns_lshl_b32 s{S_T2}, s{S_DN}, 7")
        for i in range(4):
            a(f"s_mul_i32 s{S_T0}, s{u}, 11\ns_add_u32 s{S_T0}, s{S_T0}, {3*i}")
            if i == 3: a(f"s_min_u32 s{S_T0}, s{S_T0}, 41")
            a(f"s_lshl_b32 s{S_W2+i}, s{S_T0}, 15\ns_add_u32 s{S_W2+i}, s{S_W2+i}, s{S_T2}\ns_lshl_b32 s{S_HD+i}, s{S_T0}, 13\ns_add_u32 s{S_HD+i}, s{S_HD+i}, s{S_T1}")
        a(f"s_cmp_eq_u32 s{u}, 3\ns_cselect_b32 s{S_W2C}, s{S_W2+1}, s{S_W2+2}")
        a(f"s_lshr_b32 s{S_T0}, s2, 3\ns_lshl_b32 s{S_T0}, s{S_T0}, 2\ns_add_u32 s{S_T0}, s{S_T0}, s{u}\ns_lshr_b32 s{S_T1}, s{S_J}, 3")
        a(f"s_mul_i32 s{S_PFW}, s{S_T0}, 43\ns_lshr_b32 s{S_PFW}, s{S_PFW}, 2\ns_min_u32 s{S_PFW}, s{S_PFW}, 1364\ns_lshl_b32 s{S_PFW}, s{S_PFW}, 10\ns_lshl_b32 s{S_T2}, s{S_T1}, 9\ns_add_u32 s{S_PFW}, s{S_PFW}, s{S_T2}")
        a(f"s_lshl_b32 s{S_PFC}, s{S_T1}, 7\ns_add_u32 s{S_PFC}, s{S_PFC}, s{S_T0}\ns_lshl_b32 s{S_PFC}, s{S_PFC}, 11")
        stamp(3)
        l2pf = [(None, 0, S_PFW, 2048*i, DPF, R_W2, "pf") for i in range(6)]
        l2pf += [(None, 0, S_PFC, 1024*i, VL16, r, "pf") for r in (R_CRE, R_CIM) for i in range(2)]
        if not self.opt.get("l2pf", 1): l2pf = []
        def cs_reads(c):
            sl = c % 4
            for k in range(8): a(f"ds_read_b64_tr_b16 {vr(CF+2*k,2)}, v{VCS+(sl>>1)} offset:{(sl&1)*SLOT+(k>>1)*3072+(k&1)*256}")
        def cs_mfma():
            a("s_waitcnt lgkmcnt(0)")
            for k in range(8): a(f"v_mfma_f32_4x4x4_16b_bf16 {vr(CA+4*(k&3),4)}, {vr(ONES,2)}, {vr(CF+2*k,2)}, {vr(CA+4*(k&3),4)}")
        steps = [("m", 0, k) for k in range(8)] + [("m", 1, k) for k in range(8)] + [("m", 2, k) for k in range(6)] + [("s", 3, k) for k in range(16)]
        groups = [(0, 4, 0), (4, 8, 1), (8, 12, 2), (12, 16, 3), (16, 20, 0), (20, 22, 1), (22, 26, 2), (26, 30, 3), (30, 34, 0), (34, 38, 1)]
        grp_of = {}
        for gi, (n0, n1, pc) in enumerate(groups):
            for n in range(n0, n1): grp_of[n] = gi
        def wdmas(gi):
            n0, n1, pc = groups[gi]; out = []
            if steps[n0][0] == "m":
                for n in range(n0, n1):
                    _, stage, k = steps[n]; i, step = k >> 1, k & 1
                    base = S_W2C if (stage == 2 and i == 2) else S_W2 + i
                    for h in range(2):
                        out.append((S_PU, pc*SLOT + (n - n0)*2048 + 1024*h, base, stage*32768 + step*16384 + 8192*h, DW2, R_W2, f"w{gi}"))
            else:
                dch = steps[n0][2] >> 2; b, part = dch >> 1, dch & 1
                for i in range(8):
                    out.append((S_PU, pc*SLOT + 1024*i, S_CO, 128*b + 8192*i, DB + (i & 1), R_CIM if part else R_CRE, f"w{gi}"))
            return out
        WR = 8
        def wreads(n):
            n0, n1, pc = groups[grp_of[n]]; kk = n - n0; hi = pc >> 1; po = (pc & 1) * SLOT; ws = WQ + 8*(n % WR)
            out = []
            if steps[n][0] == "m":
                for dt in range(2):
                    for q in range(2):
                        out.append(f"ds_read_b64_tr_b16 {vr(ws+4*dt+2*q,2)}, v{VT+2*hi+dt} offset:{po+kk*2048+q*1024}")
            else:
                for dt in range(2): out.append(f"ds_read_b128 {vr(ws+4*dt,4)}, v{VC+4*hi+kk} offset:{po+dt*4096}")
            return out
        seq = []
        for c in range(1, 8):
            ds = chunk(c)[3:] if c == 1 else chunk(c)
            seq += [(c - 3, d) for d in ds]
            if 1 <= c <= 5: seq += [(-1, d) for d in l2pf[2*(c - 1):2*c]]
        for gi in range(3): seq += [(5 + gi, d) for d in wdmas(gi)]
        AHEAD = self.opt.get("ahead", 11)
        pos = [0]
        def feed(b):
            while pos[0] < len(seq) and seq[pos[0]][0] <= b:
                if b < 7:
                    idx = [i for i, t in enumerate(vm.q) if t == f"c{b+1}"]
                    left = any(d[6] == f"c{b+1}" for _, d in seq[pos[0]:])
                    if not left and (not idx or len(vm.q) - 1 - idx[-1] >= AHEAD): break
                elif len(vm.q) >= self.opt.get("preX", 20): break
                dma(*seq[pos[0]][1]); pos[0] += 1
        feed(-1)
        stamp(2)
        for b in range(0, 8):
            vm.wait(f"c{b}"); a("s_barrier")
            stamp(16 + b)
            a(f"s_cmp_eq_u32 s{u}, 3\ns_cbranch_scc1 L_L_CR{b}")
            cs_reads(b)
            a.label(f"L_L_CR{b}")
            if b == 4:
                a(f"s_lshl_b32 s{S_T1}, s{S_TT}, 2\ns_add_u32 s{S_T1}, s{S_T1}, s{u}\ns_lshl_b32 s{S_T1}, s{S_T1}, 9\ns_mul_i32 s{S_T2}, s{u}, {TRW}\ns_mov_b32 exec_hi, 0")
                dma(S_T2, L_ST, S_T1, WS_ST, VL16, R_WS, "stat", "sc1")
                a("s_mov_b32 exec_hi, -1")
            if b < 7: feed(b)
            if b in (0, 1):
                for r in range(ACC + 32*b, ACC + 32*b + 32, 2): a(f"v_mov_b64 {vr(r,2)}, 0")
            if b == 5:
                assert not any(d[6].startswith('c') for _, d in seq[pos[0]:])
                a(f"v_mov_b32 v{T}, {L_HF}\nds_read_b64 {vr(T+2,2)}, v{T} offset:8\ns_waitcnt lgkmcnt(0)\nv_readfirstlane_b32 s{S_TAGG}, v{T+2}\nv_readfirstlane_b32 s{S_TAGC}, v{T+3}")
            a(f"s_cmp_eq_u32 s{u}, 3\ns_cbranch_scc1 L_L_CM{b}")
            cs_mfma()
            if b == 7:
                a(f"s_lshl_b32 s{S_T0}, s{u}, 7\ns_add_u32 s{S_T0}, s{S_T0}, {L_CS}\nv_lshl_add_u32 v{CF}, v1, 2, s{S_T0}\ns_nop 1")
                a(f"v_add_f32 v{CA}, v{CA}, v{CA+4}\nv_add_f32 v{CA+8}, v{CA+8}, v{CA+12}\nv_add_f32 v{CA}, v{CA}, v{CA+8}\nv_mov_b32 v{CA+1}, v{CA}\ns_nop 1")
                a(f"v_permlane32_swap_b32 v{CA}, v{CA+1}\nv_add_f32 v{CA}, v{CA}, v{CA+1}\nds_write_b32 v{CF}, v{CA}")
            a.label(f"L_L_CM{b}")
        feed(7)
        rest = [d for _, d in seq[pos[0]:]]
        stamp(5)
        a(f"s_cmp_eq_u32 s{u}, 3\ns_cselect_b32 s{S_HDC}, s{S_HD+1}, s{S_HD+2}")
        a(f"s_mul_i32 s{S_HDD}, s{S_TT}, {HID_TT}\ns_lshl_b32 s{S_T0}, s{S_TH}, 11\ns_add_u32 s{S_HDD}, s{S_HDD}, s{S_T0}\ns_lshl_b32 s{S_T0}, s{u}, 16\ns_add_u32 s{S_HDD}, s{S_HDD}, s{S_T0}\ns_add_u32 s{S_HDD}, s{S_HDD}, {86*4096}")
        a(f"s_lshl_b32 s{S_CO}, s{S_DN}, 16\ns_lshl_b32 s{S_T0}, s{u}, 8\ns_add_u32 s{S_CO}, s{S_CO}, s{S_T0}")
        a(f"s_lshl_b32 s{S_FP}, s{S_TT}, 2\ns_add_u32 s{S_FP}, s{S_FP}, s{u}\ns_lshl_b32 s{S_FP}, s{S_FP}, 1\ns_add_u32 s{S_FP}, s{S_FP}, s{S_TH}\ns_lshl_b32 s{S_FP}, s{S_FP}, 9\ns_add_u32 s{S_FP}, s{S_FP}, {WS_FL}")
        a("s_waitcnt lgkmcnt(0)\ns_barrier")
        stamp(6)
        EE, RA, RB = T + 8, T + 4, T + 6
        a(f"s_cmp_lg_u32 s{u}, 3\ns_cbranch_scc1 L_L_NOPUB")
        a(f"v_lshlrev_b32 v{T}, 4, v1\nv_add_u32 v{T+1}, {L_E}, v{T}\nv_lshlrev_b32 v{T+2}, 3, v1\nv_add_u32 v{T+2}, {L_PW}, v{T+2}")
        for k, r in enumerate((MUL, NU, NU8)): a(f"ds_read_b64 {vr(r,2)}, v{T+2} offset:{k*TRW}")
        for k in range(8): a(f"ds_read_b128 {vr(EE+4*k,4)}, v{T+1} offset:{k*512}")
        a(f"s_lshl_b32 s{S_T1}, s{S_J}, 4\ns_add_u32 s{S_T1}, s{S_T1}, s{S_TT}\ns_lshl_b32 s{S_T1}, s{S_T1}, 9\ns_add_u32 s{S_T1}, s{S_T1}, {WS_SG}")
        a("s_waitcnt lgkmcnt(8)")
        self.hprep(MUL); self.hprep(NU); self.hprep(NU8)
        cur = EE; nx = RA
        for sg in range(1, 16):
            if sg % 2 == 0 or sg == 1: a(f"s_waitcnt lgkmcnt({7 - sg//2})")
            horner(cur, MUL, EE + 2*sg, nx); cur = nx; nx = RB if nx == RA else RA
        assert cur == RA
        a(f"v_mov_b32 v{RA+2}, s{S_TAGC}\nv_mov_b32 v{RA+3}, s{S_TAGC}")
        a(f"buffer_store_dwordx4 {vr(RA,4)}, v{T}, {sr(R_WS,4)}, s{S_T1} offen sc1")
        stamp(24)
        a.label("L_L_NOPUB")
        vm.thr = self.opt.get('thr', None)
        for d in rest: dma(*d)
        vm.wait("w0")
        for n in range(0, 4):
            for l in wreads(n): a(l)
        for d in wdmas(3): dma(*d)
        a("s_waitcnt lgkmcnt(0)")
        vm.wait("w1")
        for n in range(4, 8):
            for l in wreads(n): a(l)
        for d in wdmas(4): dma(*d)
        a("s_waitcnt lgkmcnt(0)")
        for d in wdmas(5): dma(*d)
        stamp(7)
        a(f"s_cmp_lg_u32 s{u}, 3\ns_cbranch_scc1 L_L_LBE")
        VO, VX_, LB = T + 8, T + 16, T + 32
        a(f"s_sub_u32 s{S_T2}, s{S_TT}, 1\nv_lshlrev_b32 v{T+1}, 3, v2\nv_sub_u32 v{T+1}, s{S_T2}, v{T+1}\nv_lshl_add_u32 v{T+2}, v{T+1}, 9, v{T}\nv_mov_b32 v{T+3}, {OOB}\nv_mov_b32 v{T+24}, s{S_TAGC}")
        for i in range(8):
            a(f"v_cmp_le_i32 vcc, {i}, v{T+1}\nv_subrev_u32 v{VO+i}, {512*i}, v{T+2}\ns_nop 0\nv_cndmask_b32 v{VO+i}, v{T+3}, v{VO+i}, vcc\nv_cndmask_b32 v{VX_+i}, 0, v{T+24}, vcc")
        a(f"s_lshl_b32 s{S_T1}, s{S_J}, 13\ns_add_u32 s{S_T1}, s{S_T1}, {WS_SG}\ns_mov_b32 s{S_T2}, {SPIN}")
        a.label("L_L_LB")
        for i in range(8): a(f"buffer_load_dwordx4 {vr(LB+4*i,4)}, v{VO+i}, {sr(R_WS,4)}, s{S_T1} offen sc1")
        a(f"s_mov_b64 s[88:89], 0\ns_sub_u32 s{S_T2}, s{S_T2}, 1\ns_waitcnt vmcnt(0)")
        for i in range(8): a(f"v_cmp_ne_u32 vcc, v{LB+4*i+2}, v{VX_+i}\ns_or_b64 s[88:89], s[88:89], vcc")
        a(f"s_cmp_eq_u32 s{S_T2}, 0\ns_cbranch_scc1 L_L_LBOK\ns_cmp_lg_u64 s[88:89], 0\ns_cbranch_scc1 L_L_LB")
        a.label("L_L_LBOK")
        cur = LB + 28; nx = RA
        for i in range(6, -1, -1):
            horner(cur, NU, LB + 4*i, nx); cur = nx; nx = RB if nx == RA else RA
        assert cur == RA
        a(f"v_mov_b32 v{RB}, v{RA}\nv_mov_b32 v{RB+1}, v{RA+1}\ns_nop 1\nv_permlane32_swap_b32 v{RA}, v{RB}\nv_permlane32_swap_b32 v{RA+1}, v{RB+1}\ns_nop 0")
        horner(RB, NU8, RA, EE)
        a(f"v_lshlrev_b32 v{T+1}, 3, v1\nv_add_u32 v{T+1}, {L_H}, v{T+1}\nv_mov_b32 v{T+2}, {L_HF}\nv_mov_b32 v{T+3}, 1\nds_write_b64 v{T+1}, {vr(EE,2)}\nds_write_b32 v{T+2}, v{T+3}")
        a(f"s_cmp_lg_u32 s{S_TT}, 15\ns_cbranch_scc1 L_L_LBE\ns_lshl_b32 s{S_T1}, s{S_J}, 7\ns_add_u32 s{S_T1}, s{S_T1}, {WS_WC}\nv_mov_b32 v{T}, 0")
        a(f"buffer_store_dword v{T+24}, v{T}, {sr(R_WS,4)}, s{S_T1} offen sc1")
        a.label("L_L_LBE")
        stamp(8)
        RING = 10; DIST = self.opt.get("dist", 8)
        PF = 16
        a(f"s_add_u32 s24, s{P_WS}, s{S_FP}\ns_addc_u32 s25, s{P_WS+1}, 0\ns_mov_b32 s26, s{S_TAGG}\ns_mov_b32 s27, s{S_TAGG}")
        lg = []
        def poll_issue(stage):
            a(f"s_load_dwordx8 s[16:23], s[24:25], {stage*128} glc")
        def poll_check(stage):
            a(f"s_mov_b32 s{S_T2}, {SPIN}")
            a.label(f"L_L_P{stage}")
            a("s_waitcnt lgkmcnt(0)")
            for k in range(4): a(f"s_xor_b64 s[{16+2*k}:{17+2*k}], s[{16+2*k}:{17+2*k}], s[26:27]")
            a("s_or_b64 s[16:17], s[16:17], s[18:19]\ns_or_b64 s[20:21], s[20:21], s[22:23]\ns_or_b64 s[16:17], s[16:17], s[20:21]")
            a(f"s_cbranch_scc0 L_L_Q{stage}\ns_sub_u32 s{S_T2}, s{S_T2}, 1\ns_cbranch_scc1 L_L_Q{stage}")
            poll_issue(stage)
            a(f"s_branch L_L_P{stage}")
            a.label(f"L_L_Q{stage}")
            del lg[:]
            stamp(9 + stage)
        def hid_load(n):
            kind, stage, k = steps[n]
            if kind == "m":
                i, step = k >> 1, k & 1
                base = S_HDC if (stage == 2 and i == 2) else S_HD + i
                imm = stage*8192 + step*4096
            else:
                dch, s = k >> 2, k & 3; b, part = dch >> 1, dch & 1
                base = S_HDD; imm = (8*b + 4*(s >> 1) + 2*part + (s & 1)) * 4096
            a(f"s_add_u32 s{S_T0}, s{base}, {imm}")
            for tw in range(2):
                vm.op(f"buffer_load_dwordx4 {vr(HB+8*(n%RING)+4*tw,4)}, v{VL16}, {sr(R_WS,4)}, s{S_T0} offen offset:{tw*1024} {self.opt_s('hld','sc1')}", f"h{n}")
        N = len(steps)
        first = {8: 1, 16: 2, 22: 3}
        pi = {self.opt.get("piB", 0): 1, self.opt.get("piC", 5): 2, self.opt.get("piD", 11): 3}
        pc = {1: self.opt.get("pcB", 2), 2: self.opt.get("pcC", 8), 3: self.opt.get("pcD", 14)}
        refill = {}
        for gi, n_from in ((6, 5), (7, 9), (8, 13), (9, 17)):
            ds = wdmas(gi)
            for k in range(0, len(ds), 2): refill[n_from + k//2] = ds[k:k+2]
        poll_issue(0); poll_check(0)
        issued = 0; spoll = [False]
        def issue_to(m_to, n):
            nonlocal issued
            while issued < min(m_to, N):
                if issued in first:
                    if n < pc[first[issued]]: return
                    poll_check(first[issued]); spoll[0] = False
                hid_load(issued); issued += 1
        issue_to(self.opt.get("h0", 8), -1)
        def mfma(n, dt, tw):
            A = ACC + 32*tw + 16*dt
            return f"v_mfma_f32_32x32x16_bf16 {vr(A,16)}, {vr(WQ+8*(n%WR)+4*dt,4)}, {vr(HB+8*(n%RING)+4*tw,4)}, {vr(A,16)}"
        TAILN = 4
        for n in range(N - TAILN):
            vm.wait(f"h{n}")
            if n in lg:
                k = len(lg) - 1 - max(i for i, x in enumerate(lg) if x == n)
                a(f"s_waitcnt lgkmcnt({0 if spoll[0] else min(k,15)})")
                lg[:] = lg[len(lg) - k:]
            dummy = n in (20, 21)
            if dummy: a(f"s_cmp_eq_u32 s{u}, 3\ns_cbranch_scc1 L_L_SK{n}")
            for dt, tw in ((0, 0), (0, 1), (1, 0), (1, 1)): a(mfma(n, dt, tw))
            if dummy: a.label(f"L_L_SK{n}")
            if n + WR < N:
                vm.wait(f"w{grp_of[n+WR]}")
                for l in wreads(n + WR): a(l); lg.append(n + WR)
            if n == self.opt.get("thr_off", 14): vm.thr = None
            if n in pi: poll_issue(pi[n]); spoll[0] = True
            issue_to(n + 1 + DIST, n)
            if n in refill:
                gi = int(refill[n][0][6][1:]); prev = max(g for g in range(gi) if groups[g][2] == groups[gi][2])
                last = groups[prev][1] - 1
                if any(x <= last for x in lg):
                    k = len(lg) - 1 - max(i for i, x in enumerate(lg) if x <= last)
                    a(f"s_waitcnt lgkmcnt({0 if spoll[0] else min(k,15)})"); lg[:] = lg[len(lg) - k:]
                for d in refill[n]: dma(*d)
            if n in (7, 15, 21, 29): stamp(25 + (7, 15, 21, 29).index(n))
        a("s_waitcnt lgkmcnt(0)")
        order = ((0, 0), (1, 0), (0, 1), (1, 1))
        def wr(dt, tw, jj): return f"ds_write_b128 v{VRED}, {vr(ACC+32*tw+16*dt+4*jj,4)} offset:{tw*SLOT+dt*128+jj*32}"
        for ti, (dt, tw) in enumerate(order):
            for k, n in enumerate(range(N - TAILN, N)):
                if ti == 0: vm.wait(f"h{n}")
                a(mfma(n, dt, tw))
                if ti >= 2 or (ti == 1 and False):
                    a(wr(*order[ti - 2], k))
        stamp(13)
        for jj in range(4): a(wr(*order[2], jj))
        a("s_nop 7")
        for jj in range(4): a(wr(*order[3], jj))
        a("s_waitcnt lgkmcnt(0)")
        stamp(14)
        a("s_barrier")
        self.prof_store()
        a.label("L_END")
        a("s_endpgm")

    def compute(self):
        a = self.a; stamp = self.stamp; horner = self.horner; csq = self.csq; bf16r = self.bf16r
        a.label("L_COMPUTE")
        URE, UIM, AM = 16, 32, [48, 64, 80]
        FS = [108, 132]
        VX, VA, VW = 156, 160, 164
        LAM, LI, COEF, CI, MU, ONES = 96, 98, 100, 102, 168, 174
        SM, SR, SQ = 176, 166, 178
        VL16, VFL, VHH, VE = 180, 181, 182, 183
        T = 184
        S_C, S_DELTA, S_K, S_HO, S_FLO, S_M3 = 84, 85, 86, 88, 89, 92
        vm = VM(a)
        w = S_WAVE
        X0, G0 = 108, 116
        if self.opt.get("ipf", 1):
            a(f"s_getpc_b64 s[90:91]")
            a.label("L_PC")
            a(f"s_lshr_b32 s{S_T0}, s2, 3\ns_lshl_b32 s{S_T0}, s{S_T0}, 2\ns_add_u32 s{S_T0}, s{S_T0}, s{w}\nv_and_b32 v{T+10}, 1, v0\nv_lshl_add_u32 v{T+10}, s{S_T0}, 1, v{T+10}")
            a(f"v_lshlrev_b32 v{T+10}, 7, v{T+10}\nv_min_u32 v{T+10}, L_CODE_END-{KNAME}-4, v{T+10}\ns_sub_u32 s90, s90, L_PC-{KNAME}\ns_subb_u32 s91, s91, 0")
            a(f"v_mov_b32 v{T+11}, s91\nv_add_co_u32 v{T+10}, vcc, s90, v{T+10}\ns_nop 1\nv_addc_co_u32 v{T+11}, vcc, 0, v{T+11}, vcc")
            vm.op(f"global_load_dword v{T+15}, {vr(T+10,2)}, off", "ipf")
        a(f"s_lshl_b32 s{S_T0}, s{S_TT}, 4\ns_add_u32 s{S_T0}, s{S_T0}, s{S_J}\ns_lshl_b32 s{S_T0}, s{S_T0}, 2\ns_add_u32 s{S_T0}, s{S_T0}, s{w}\ns_lshl_b32 s90, s{S_T0}, 5\ns_lshl_b32 s{S_T0}, s{S_T0}, 11")
        a(f"v_lshlrev_b32 v{T+8}, 4, v1\nv_lshl_add_u32 v{T+9}, v2, 10, v{T+8}\ns_lshl_b32 s{S_T1}, s{S_J}, 6\nv_lshl_add_u32 v{T+2}, v1, 1, s{S_T1}")
        self.after_kernarg()
        vm.op(f"buffer_load_dwordx4 {vr(X0,4)}, v{T+9}, {sr(R_X,4)}, s{S_T0} offen", "st")
        vm.op(f"buffer_load_dwordx4 {vr(X0+4,4)}, v{T+9}, {sr(R_X,4)}, s{S_T0} offen offset:512", "st")
        vm.op(f"global_load_dwordx4 {vr(G0,4)}, v{T+8}, {sr(P_GW,2)}", "st")
        vm.op(f"global_load_dwordx4 {vr(G0+4,4)}, v{T+8}, {sr(P_GW,2)} offset:512", "st")
        self.srd_ws()
        a(f"s_lshl_b32 s{S_T0}, s{S_TT}, 7\ns_add_u32 s{S_T0}, s{S_T0}, {WS_WG}\nv_mov_b32 v{T}, 0")
        vm.op(f"buffer_load_dword v{T+1}, v{T}, {sr(R_WS,4)}, s{S_T0} offen sc1", "st")
        a(f"s_lshl_b32 s{S_T0}, s{S_J}, 7\ns_add_u32 s{S_T0}, s{S_T0}, {WS_WC}")
        vm.op(f"buffer_load_dword v165, v{T}, {sr(R_WS,4)}, s{S_T0} offen sc1", "st")
        vm.op(f"global_load_ushort v{T+4}, v{T+2}, {sr(P_LRE,2)}", "par")
        vm.op(f"global_load_ushort v{T+5}, v{T+2}, {sr(P_LIM,2)}", "par")
        vm.op(f"global_load_ushort v{T+6}, v{T+2}, {sr(P_LDT,2)}", "par")
        a(f"s_sub_u32 s{S_T0}, s{S_NT}, 1\ns_min_u32 s{S_T0}, s{S_T0}, s{w}\ns_add_u32 s{S_T0}, s{S_T0}, s{S_CT0}\ns_lshl_b32 s{S_T0}, s{S_T0}, 6\nv_lshl_add_u32 v{T+3}, v1, 1, s{S_T0}")
        vm.op(f"global_load_ushort v{T+7}, v{T+3}, {sr(P_B1,2)}", "b1")
        stamp(1)
        self.srd(R_OUT, P_OUT, 2048*2048)
        a(f"v_bfe_u32 v{T+8}, v1, 1, 3\nv_lshlrev_b32 v{T+9}, 7, v1")
        a(f"v_bfe_u32 v{T+10}, v0, 2, 2\nv_lshl_add_u32 v{T+10}, v2, 3, v{T+10}\nv_lshlrev_b32 v{T+10}, 6, v{T+10}")
        a(f"v_bfe_u32 v{T+11}, v0, 4, 1\nv_lshl_add_u32 v{T+10}, v{T+11}, 5, v{T+10}\nv_and_b32 v{T+11}, 3, v0\nv_lshl_add_u32 v{T+10}, v{T+11}, 3, v{T+10}")
        a(f"s_lshl_b32 s{S_T2}, s{w}, 12")
        for s in range(4):
            a(f"v_add_u32 v{T+11}, {2*s}, v2\nv_xor_b32 v{T+11}, v{T+11}, v{T+8}\nv_lshl_add_u32 v{VA+s}, v{T+11}, 4, v{T+9}\nv_add_u32 v{VX+s}, s{S_T2}, v{VA+s}")
        a(f"v_add_u32 v{VW}, {L_W1}, v{T+10}")
        for r in range(16, 96, 2): a(f"v_mov_b64 {vr(r,2)}, 0")
        a(f"v_mov_b32 v{ONES}, 0x3f803f80\nv_mov_b32 v{ONES+1}, 0x3f803f80")
        a(f"v_lshlrev_b32 v{VL16}, 4, v0\nv_lshlrev_b32 v{VHH}, 4, v2")
        a(f"v_mov_b32 v{VFL}, {OOB}\nv_cmp_eq_u32 vcc, 0, v0\ns_mov_b32 s{S_K}, {fh(-2.302208198*0.044715)}\ns_mov_b32 s{S_K+1}, {fh(-2.302208198)}\nv_cndmask_b32 v{VFL}, v{VFL}, v0, vcc")
        a(f"s_lshl_b32 s{S_T0}, s{w}, 10\nv_lshl_add_u32 v{VE}, v2, 9, s{S_T0}\nv_lshl_add_u32 v{VE}, v1, 4, v{VE}")
        a(f"s_mul_i32 s{S_HO}, s{S_TT}, {HID_TT}\ns_lshl_b32 s{S_T0}, s{w}, 10\ns_add_u32 s{S_HO}, s{S_HO}, s{S_T0}")
        a(f"s_lshr_b32 s{S_T0}, s{S_J}, 2\ns_lshl_b32 s{S_T1}, s{S_TT}, 2\ns_add_u32 s{S_T0}, s{S_T0}, s{S_T1}\ns_lshl_b32 s{S_T0}, s{S_T0}, 1\ns_lshr_b32 s{S_T1}, s{w}, 1\ns_add_u32 s{S_T0}, s{S_T0}, s{S_T1}\ns_lshl_b32 s{S_FLO}, s{S_T0}, 9")
        a(f"s_and_b32 s{S_T0}, s{S_J}, 3\ns_lshl_b32 s{S_T0}, s{S_T0}, 1\ns_and_b32 s{S_T1}, s{w}, 1\ns_add_u32 s{S_T0}, s{S_T0}, s{S_T1}\ns_lshl_b32 s{S_T0}, s{S_T0}, 2\ns_add_u32 s{S_FLO}, s{S_FLO}, s{S_T0}\ns_add_u32 s{S_FLO}, s{S_FLO}, {WS_FL}")
        vm.wait("st")
        stamp(2)
        self.tag_from(S_TAGG, T+1); self.tag_from(S_TAGC, 165)
        F, GF, PB = T + 16, T + 32, T + 48
        s1, s2, s3 = T + 12, T + 13, T + 14
        a(f"v_mov_b32 v{s1}, 0\nv_mov_b32 v{s2}, 0\nv_mov_b32 v{s3}, 0")
        for i in range(8):
            a(f"v_lshlrev_b32 v{F+2*i}, 16, v{X0+i}\nv_and_b32 v{F+2*i+1}, 0xffff0000, v{X0+i}\nv_lshlrev_b32 v{GF+2*i}, 16, v{G0+i}\nv_and_b32 v{GF+2*i+1}, 0xffff0000, v{G0+i}")
        for i in range(8): a(f"v_pk_mul_f32 {vr(GF+2*i,2)}, {vr(GF+2*i,2)}, {vr(F+2*i,2)}")
        for i in range(8): a(f"v_cvt_pk_bf16_f32 v{PB+i}, v{GF+2*i}, v{GF+2*i+1}")
        for i in range(8): a(f"v_dot2_f32_bf16 v{s1}, v{X0+i}, v{ONES}, v{s1}\nv_dot2_f32_bf16 v{s3}, v{X0+i}, v{X0+i}, v{s3}\nv_dot2_f32_bf16 v{s2}, v{PB+i}, v{ONES}, v{s2}")
        a("s_nop 0")
        rs = [s1, s3, s2]
        for m in ("quad_perm:[1,0,3,2]", "quad_perm:[2,3,0,1]", "row_half_mirror", "row_mirror"):
            for r in rs:
                if m.startswith("quad_perm:[1") and r != s1: a("s_nop 0")
                a(f"v_add_f32_dpp v{r}, v{r}, v{r} {m} row_mask:0xf bank_mask:0xf")
        for k, r in enumerate(rs): a(f"v_mov_b32 v{PB+k}, v{r}")
        for k, r in enumerate(rs): a(f"v_permlane16_swap_b32 v{r}, v{PB+k}")
        for k, r in enumerate(rs): a(f"v_add_f32 v{r}, v{r}, v{PB+k}")
        GR = T + 16
        a(f"v_mul_f32 v{s1}, {fh(1/512)}, v{s1}\nv_mul_f32 v{s3}, {fh(1/512)}, v{s3}")
        bf16r(s2, s2)
        a(f"v_fma_f32 v{s3}, -v{s1}, v{s1}, v{s3}\nv_mul_f32 v{s2}, {fh(-1.4426950408889634)}, v{s2}\nv_max_f32 v{s3}, 0, v{s3}\nv_exp_f32 v{s2}, v{s2}")
        bf16r(s3, s3); bf16r(GR, s1)
        a(f"v_add_f32 v{s3}, {fh(1e-5)}, v{s3}\nv_add_f32 v{s2}, 1.0, v{s2}")
        bf16r(s3, s3)
        a(f"v_rcp_f32 v{s2}, v{s2}\nv_sqrt_f32 v{s3}, v{s3}")
        bf16r(GR+2, s2); bf16r(s3, s3)
        a(f"v_mov_b32 v{GR+3}, s{S_TAGG}\nv_rcp_f32 v{GR+1}, v{s3}")
        a(f"v_mov_b32 v{s1}, {OOB}\nv_cmp_eq_u32 vcc, 0, v1\nv_lshlrev_b32 v{s2}, 4, v2\ns_add_u32 s90, s90, {WS_ST}\nv_cndmask_b32 v{s1}, v{s1}, v{s2}, vcc")
        vm.op(f"buffer_store_dwordx4 {vr(GR,4)}, v{s1}, {sr(R_WS,4)}, s90 offen sc1", "sts")
        vm.wait("par")
        self.params(T+4, LAM, T+24, COEF)
        csq(MU, LAM, T+24); csq(T+26, MU, T+24); csq(MU, T+26, T+24)
        self.hprep(MU)
        a(f"v_mov_b32 v{LI}, v{LAM+1}\nv_mov_b32 v{CI}, v{COEF+1}")
        vm.wait("b1")
        a(f"s_min_u32 s{S_T0}, s{w}, 2\ns_lshl_b32 s{S_T0}, s{S_T0}, 7\nv_lshl_add_u32 v{T}, v1, 2, s{S_T0}\nv_lshlrev_b32 v{T+7}, 16, v{T+7}")
        a(f"s_cmp_eq_u32 s{w}, 3\ns_cbranch_scc1 L_C_NOB1")
        a(f"v_add_u32 v{T}, {L_CS}, v{T}\nds_write_b32 v{T}, v{T+7} offset:384\ns_branch L_C_B1D")
        a.label("L_C_NOB1")
        P1, P2 = T + 26, T + 28
        a(f"v_lshlrev_b32 v{T}, 3, v1\nv_add_u32 v{T}, {L_PW}, v{T}\nds_write_b64 v{T}, {vr(MU,2)}")
        csq(P1, MU, T+24); csq(P2, P1, T+24); csq(P1, P2, T+24); csq(P2, P1, T+24)
        a(f"ds_write_b64 v{T}, {vr(P2,2)} offset:{TRW}")
        csq(P1, P2, T+24); csq(T+30, P1, T+24); csq(P1, T+30, T+24)
        a(f"ds_write_b64 v{T}, {vr(P1,2)} offset:{2*TRW}")
        a(f"v_mov_b32 v{T+8}, 0\nv_mov_b32 v{T+9}, 0\nv_mov_b32 v{T+10}, s{S_TAGG}\nv_mov_b32 v{T+11}, s{S_TAGC}\nv_mov_b32 v{T+1}, {L_HF}\nds_write_b128 v{T+1}, {vr(T+8,4)}")
        a.label("L_C_B1D")
        a(f"s_mov_b32 s{S_C}, 0\ns_mov_b32 s91, {SLOT}\ns_mov_b32 s{S_M3}, 0\ns_waitcnt lgkmcnt(0)")
        stamp(15)
        a("s_barrier")
        stamp(16)

        def rd(set_, s, which):
            F = FS[set_]
            if which == 0: return f"ds_read_b128 {vr(F,4)}, v{VX+s}"
            if which == 1: return f"ds_read_b128 {vr(F+4,4)}, v{VA+s} offset:{L_B}"
            if which == 2: return f"ds_read_b128 {vr(F+8,4)}, v{VA+s} offset:{L_B+4096}"
            ft, q = divmod(which - 3, 2)
            return f"ds_read_b64_tr_b16 {vr(F+12+4*ft+2*q,2)}, v{VW} offset:{s*3072+q*256+ft*1024}"
        def mf(set_, i):
            F = FS[set_]
            if i == 0: return f"v_mfma_f32_32x32x16_bf16 {vr(URE,16)}, {vr(F,4)}, {vr(F+4,4)}, {vr(URE,16)}"
            if i == 1: return f"v_mfma_f32_32x32x16_bf16 {vr(UIM,16)}, {vr(F,4)}, {vr(F+8,4)}, {vr(UIM,16)}"
            return f"v_mfma_f32_32x32x16_bf16 {vr(AM[i-2],16)}, {vr(F+12+4*(i-2),4)}, {vr(F,4)}, {vr(AM[i-2],16)}"
        for k in range(9): a(rd(0, 0, k))
        loop0 = len(a.lines)
        a.label("L_C_LOOP")
        for s in range(3):
            cur, nxt = s & 1, (s + 1) & 1
            waits = [7, 8, 8, 8, 8]
            for i in range(5):
                a(f"s_waitcnt lgkmcnt({waits[i]})"); a(mf(cur, i))
                for k in range(2*i, min(2*i + 2, 9)): a(rd(nxt, s + 1, k))
        a("s_waitcnt lgkmcnt(7)"); a(mf(1, 0))
        a(f"s_add_u32 s{S_M3}, s{S_M3}, 1\ns_cmp_eq_u32 s{S_M3}, 4\ns_cselect_b32 s{S_DELTA}, {(-3*SLOT) & 0xffffffff}, s91\ns_cselect_b32 s{S_M3}, 0, s{S_M3}")
        a("s_waitcnt lgkmcnt(6)"); a(mf(1, 1))
        a(f"s_add_u32 s{S_C}, s{S_C}, 1\ns_cmp_eq_u32 s{S_C}, 8\ns_cbranch_scc1 L_C_TAIL")
        a(f"v_add_u32 v{VX}, s{S_DELTA}, v{VX}\nv_add_u32 v{VA}, s{S_DELTA}, v{VA}\nv_add_u32 v{VW}, s{S_DELTA}, v{VW}")
        a("s_waitcnt lgkmcnt(0)\ns_barrier")
        for i in range(2, 5):
            a(mf(1, i))
            for k in range(3*(i-2), 3*(i-2) + 3): a(rd(0, 0, k))
            s = i - 1
            a(f"v_add_u32 v{VX+s}, s{S_DELTA}, v{VX+s}\nv_add_u32 v{VA+s}, s{S_DELTA}, v{VA+s}")
        a("s_branch L_C_LOOP")
        self.loops.append((loop0, len(a.lines)))
        a.label("L_C_TAIL")
        a("s_waitcnt lgkmcnt(0)")
        for i in range(2, 5): a(mf(1, i))
        stamp(3)
        a(f"v_bfe_u32 v{T}, v1, 2, 1\nv_lshlrev_b32 v{T}, 4, v{T}\nv_and_b32 v{T+1}, 1, v1\nv_lshl_add_u32 v{T}, v{T+1}, 3, v{T}")
        a(f"v_lshrrev_b32 v{T+1}, 3, v1\nv_lshl_add_u32 v{T}, v{T+1}, 1, v{T}\nv_bfe_u32 v{T+1}, v1, 1, 1\nv_add_u32 v{T}, v{T}, v{T+1}\nv_lshlrev_b32 v{T}, 4, v{T}")
        a(f"s_lshl_b32 s{S_T0}, s{S_TT}, 2\ns_add_u32 s{S_T0}, s{S_T0}, s{w}\ns_lshl_b32 s{S_T0}, s{S_T0}, 9\ns_add_u32 s90, s{S_T0}, {WS_ST}")
        a(f"s_mul_i32 s{S_T0}, s{w}, {TRW}\ns_add_u32 s{S_T0}, s{S_T0}, {L_ST}\nv_add_u32 v{T+3}, s{S_T0}, v{T}")
        SA, SB = T + 8, T + 12
        cur_re, cur_im = URE, UIM
        dst = SA
        for n in range(1, 8):
            a(f"v_pk_fma_f32 {vr(dst,2)}, {vr(cur_re,2)}, {vr(LAM,2)}, {vr(URE+2*n,2)} op_sel_hi:[1,0,1]")
            a(f"v_pk_fma_f32 {vr(dst+2,2)}, {vr(cur_im,2)}, {vr(LAM,2)}, {vr(UIM+2*n,2)} op_sel_hi:[1,0,1]")
            a(f"v_pk_fma_f32 {vr(dst,2)}, {vr(cur_im,2)}, {vr(LI,2)}, {vr(dst,2)} op_sel_hi:[1,0,1] neg_lo:[0,1,0] neg_hi:[0,1,0]")
            a(f"v_pk_fma_f32 {vr(dst+2,2)}, {vr(cur_re,2)}, {vr(LI,2)}, {vr(dst+2,2)} op_sel_hi:[1,0,1]")
            cur_re, cur_im = dst, dst + 2
            dst = SB if dst == SA else SA
        stamp(23)
        a(f"v_swap_b32 v{cur_re+1}, v{cur_re+2}\nv_add_u32 v{T+1}, {L_E}, v{VE}\nds_write_b128 v{T+1}, {vr(cur_re,4)}")
        a("s_waitcnt lgkmcnt(0)")
        stamp(4)
        a("s_barrier")
        stamp(5)
        TC, TB, O = T + 8, T + 24, T + 40
        def gelu_reads(ft):
            for jj in range(4): a(f"ds_read_b128 {vr(TC+4*jj,4)}, v{T+1} offset:{ft*128+jj*32}")
            for jj in range(4): a(f"ds_read_b128 {vr(TB+4*jj,4)}, v{T+1} offset:{384+ft*128+jj*32}")
        a(f"ds_read_b128 {vr(T+4,4)}, v{T+3}\nv_add_u32 v{T+1}, {L_CS}, v{VHH}")
        gelu_reads(0)
        a(f"s_mov_b32 s{S_T2}, {SPIN}\ns_waitcnt lgkmcnt(8)")
        a.label("L_C_ST")
        a(f"v_cmp_ne_u32 vcc, s{S_TAGG}, v{T+7}\ns_sub_u32 s{S_T2}, s{S_T2}, 1\ns_cmp_eq_u32 s{S_T2}, 0\ns_cbranch_vccz L_C_STOK\ns_cbranch_scc1 L_C_STOK")
        a(f"buffer_load_dwordx4 {vr(T+4,4)}, v{T}, {sr(R_WS,4)}, s90 offen sc1\ns_waitcnt vmcnt(0)\ns_branch L_C_ST")
        a.label("L_C_STOK")
        a(f"v_sub_f32 v{SQ}, 1.0, v{T+6}\nv_sub_f32 v{SM}, 0, v{T+4}\nv_mov_b32 v{SR}, v{T+5}")
        bf16r(SQ, SQ)
        a(f"v_add_f32 v{SQ+1}, v{T+6}, v{T+6}\nv_max_f32 v{SQ}, {fh(1e-30)}, v{SQ}\ns_lshl_b32 s{S_T0}, s{w}, 7\nv_rcp_f32 v{SQ}, v{SQ}")
        a(f"s_add_u32 s{S_T0}, s{S_T0}, {L_G2}\nv_lshl_add_u32 v{T}, v1, 2, s{S_T0}\nds_write_b32 v{T}, v{SQ+1}")
        VST = VL16
        if self.opt.get("nost"):
            VST = 172; a(f"v_mov_b32 v172, {OOB}")
        def gelu(ft):
            A = AM[ft]
            a(f"s_waitcnt lgkmcnt({5 if ft == 0 else 4})")
            for p in range(8): a(f"v_pk_fma_f32 {vr(A+2*p,2)}, {vr(TC+2*p,2)}, {vr(SM,2)}, {vr(A+2*p,2)} op_sel_hi:[1,0,1]")
            a("s_waitcnt lgkmcnt(0)")
            for p in range(8): a(f"v_pk_fma_f32 {vr(A+2*p,2)}, {vr(A+2*p,2)}, {vr(SR,2)}, {vr(TB+2*p,2)} op_sel_hi:[1,0,1]")
            X = T + 48
            for p in range(8): a(f"v_pk_mul_f32 {vr(X+2*p,2)}, {vr(A+2*p,2)}, {vr(A+2*p,2)}")
            if ft < 2: gelu_reads(ft + 1)
            for p in range(8): a(f"v_pk_fma_f32 {vr(X+2*p,2)}, {vr(X+2*p,2)}, {sr(S_K,2)}, {sr(S_K,2)} op_sel:[0,0,1] op_sel_hi:[1,0,1]")
            for p in range(8): a(f"v_pk_mul_f32 {vr(X+2*p,2)}, {vr(X+2*p,2)}, {vr(A+2*p,2)}")
            for r in range(16): a(f"v_exp_f32 v{X+r}, v{X+r}")
            for p in range(8): a(f"v_pk_fma_f32 {vr(X+2*p,2)}, {vr(X+2*p,2)}, {vr(SQ,2)}, {vr(SQ,2)} op_sel_hi:[1,0,0]")
            for r in range(16): a(f"v_rcp_f32 v{X+r}, v{X+r}")
            for p in range(8): a(f"v_pk_mul_f32 {vr(X+2*p,2)}, {vr(X+2*p,2)}, {vr(A+2*p,2)}")
            a(f"s_add_u32 s{S_T0}, s{S_CT0}, {ft}\ns_lshl_b32 s{S_T0}, s{S_T0}, 13\ns_add_u32 s{S_T0}, s{S_T0}, s{S_HO}\ns_add_u32 s{S_T1}, s{S_T0}, 4096")
            for p in range(8): a(f"v_cvt_pk_bf16_f32 v{A+p}, v{X+2*p}, v{X+2*p+1}")
            stamp(17 + ft)
            vm.op(f"buffer_store_dwordx4 {vr(A,4)}, v{VST}, {sr(R_WS,4)}, s{S_T0} offen {self.opt_s('hst','sc1')}", f"st{ft}")
            vm.op(f"buffer_store_dwordx4 {vr(A+4,4)}, v{VST}, {sr(R_WS,4)}, s{S_T1} offen {self.opt_s('hst','sc1')}", f"st{ft}")
        def flag(stage):
            vm.op(f"buffer_store_dword v{T+2}, v{VFL}, {sr(R_WS,4)}, s{S_FLO} offen offset:{stage*128} sc1", "fl")
        a(f"v_mov_b32 v{T+2}, s{S_TAGG}")
        gelu(0)
        stamp(6)
        gelu(1)
        vm.wait("st0"); flag(0)
        stamp(7)
        a(f"s_cmp_eq_u32 s{S_NT}, 2\ns_cbranch_scc1 L_C_NOT2")
        q_save = list(vm.q)
        gelu(2)
        vm.wait("st1"); flag(1)
        a("s_branch L_C_T2DONE")
        a.label("L_C_NOT2")
        q_a = list(vm.q); vm.q = q_save
        a("s_waitcnt lgkmcnt(0)")
        vm.wait("st1"); flag(1)
        a.label("L_C_T2DONE")
        vm.q = q_a
        stamp(8)
        a(f"v_mov_b32 v{T}, {L_HF}\ns_mov_b32 s{S_T2}, {SPIN*8}")
        a.label("L_C_HW")
        a(f"ds_read_b32 v{T+1}, v{T}\ns_sub_u32 s{S_T2}, s{S_T2}, 1\ns_waitcnt lgkmcnt(0)\nv_cmp_eq_u32 vcc, 0, v{T+1}\ns_cmp_eq_u32 s{S_T2}, 0\ns_cbranch_scc1 L_C_HOK\ns_cbranch_vccnz L_C_HW")
        a.label("L_C_HOK")
        stamp(9)
        RA, RB, EE, G2 = T + 4, T + 6, T + 8, T + 24
        a(f"v_lshlrev_b32 v{T}, 3, v1\nv_add_u32 v{T}, {L_H}, v{T}\nds_read_b64 {vr(RA,2)}, v{T}")
        a(f"v_lshlrev_b32 v{T}, 4, v1\nv_add_u32 v{T}, {L_E}, v{T}\ns_mov_b32 s{S_T2}, s{w}")
        a(f"s_lshl_b32 s{S_T0}, s{w}, 7\ns_add_u32 s{S_T0}, s{S_T0}, {L_G2}\nv_add_u32 v{T+1}, s{S_T0}, v{VHH}")
        for jj in range(4): a(f"ds_read_b128 {vr(G2+4*jj,4)}, v{T+1} offset:{jj*32}")
        a.label("L_C_HL")
        a(f"ds_read_b128 {vr(EE,4)}, v{T}\nds_read_b128 {vr(EE+4,4)}, v{T} offset:512\nv_add_u32 v{T}, 1024, v{T}\ns_cmp_eq_u32 s{S_T2}, 0\ns_waitcnt lgkmcnt(0)\ns_cbranch_scc1 L_C_HD")
        horner(RA, MU, EE, RB); horner(RB, MU, EE+2, RA); horner(RA, MU, EE+4, RB); horner(RB, MU, EE+6, RA)
        a(f"s_sub_u32 s{S_T2}, s{S_T2}, 1\ns_branch L_C_HL")
        a.label("L_C_HD")
        R2, R3, CC = T + 16, T + 18, T + 20
        horner(RA, MU, EE, RB); horner(RB, MU, EE+2, R2); horner(R2, MU, EE+4, R3)
        a(f"v_cmp_eq_u32 vcc, 1, v2")
        vm.wait("st2"); flag(2)
        stamp(20)
        a(f"v_cndmask_b32 v{CC}, v{RA}, v{R2}, vcc\nv_cndmask_b32 v{CC+1}, v{RB}, v{R3}, vcc\nv_cndmask_b32 v{CC+2}, v{RA+1}, v{R2+1}, vcc\nv_cndmask_b32 v{CC+3}, v{RB+1}, v{R3+1}, vcc")
        PRE, PIM, OR, OI = T + 40, T + 48, T + 56, T + 58
        cur_re, cur_im = CC, CC + 2
        def post(n):
            u, v = URE + 2*n, UIM + 2*n
            a(f"v_pk_mul_f32 {vr(OR,2)}, {vr(u,2)}, {vr(COEF,2)} op_sel_hi:[1,0]")
            a(f"v_pk_mul_f32 {vr(OI,2)}, {vr(v,2)}, {vr(COEF,2)} op_sel_hi:[1,0] neg_lo:[0,1] neg_hi:[0,1]")
            a(f"v_pk_fma_f32 {vr(OR,2)}, {vr(v,2)}, {vr(CI,2)}, {vr(OR,2)} op_sel_hi:[1,0,1] neg_lo:[0,1,0] neg_hi:[0,1,0]")
            a(f"v_pk_fma_f32 {vr(OI,2)}, {vr(u,2)}, {vr(CI,2)}, {vr(OI,2)} op_sel_hi:[1,0,1] neg_lo:[0,1,0] neg_hi:[0,1,0]")
            a(f"v_pk_mul_f32 {vr(OR,2)}, {vr(OR,2)}, {vr(G2+2*n,2)}\nv_pk_mul_f32 {vr(OI,2)}, {vr(OI,2)}, {vr(G2+2*n,2)}")
            a(f"v_cvt_pk_bf16_f32 v{PRE+n}, v{OR}, v{OR+1}\nv_cvt_pk_bf16_f32 v{PIM+n}, v{OI}, v{OI+1}")
        for n in range(8):
            u, v = URE + 2*n, UIM + 2*n
            a(f"v_pk_fma_f32 {vr(u,2)}, {vr(cur_re,2)}, {vr(LAM,2)}, {vr(u,2)} op_sel_hi:[1,0,1]")
            a(f"v_pk_fma_f32 {vr(v,2)}, {vr(cur_im,2)}, {vr(LAM,2)}, {vr(v,2)} op_sel_hi:[1,0,1]")
            a(f"v_pk_fma_f32 {vr(u,2)}, {vr(cur_im,2)}, {vr(LI,2)}, {vr(u,2)} op_sel_hi:[1,0,1] neg_lo:[0,1,0] neg_hi:[0,1,0]")
            a(f"v_pk_fma_f32 {vr(v,2)}, {vr(cur_re,2)}, {vr(LI,2)}, {vr(v,2)} op_sel_hi:[1,0,1]")
            cur_re, cur_im = u, v
            if n > 0: post(n - 1)
        post(7)
        a(f"s_mul_i32 s{S_T0}, s{w}, 2560\ns_add_u32 s{S_T0}, s{S_T0}, {L_TR}\nv_mul_u32_u24 v{T}, 80, v1\nv_lshl_add_u32 v{T}, v2, 5, v{T}\nv_add_u32 v{T}, s{S_T0}, v{T}")
        a(f"v_bfe_u32 v{T+1}, v0, 2, 2\nv_lshl_add_u32 v{T+1}, v2, 3, v{T+1}\nv_mul_u32_u24 v{T+1}, 80, v{T+1}\nv_and_b32 v{T+3}, 1, v0\nv_lshl_add_u32 v{T+1}, v{T+3}, 5, v{T+1}")
        a(f"v_bfe_u32 v{T+3}, v0, 4, 1\nv_lshl_add_u32 v{T+1}, v{T+3}, 4, v{T+1}\nv_bfe_u32 v{T+3}, v0, 1, 1\nv_lshl_add_u32 v{T+1}, v{T+3}, 3, v{T+1}\nv_add_u32 v{T+1}, s{S_T0}, v{T+1}")
        HF = 16
        for part, PK in enumerate((PRE, PIM)):
            a(f"ds_write_b128 v{T}, {vr(PK,4)}\nds_write_b128 v{T}, {vr(PK+4,4)} offset:16")
            for sp in range(2):
                for q in range(2):
                    a(f"ds_read_b64_tr_b16 {vr(HF+8*part+4*sp+2*q,2)}, v{T+1} offset:{(16*sp+4*q)*80}")
        a(f"s_lshl_b32 s{S_T0}, s{S_J}, 14\ns_add_u32 s{S_T0}, s{S_T0}, s{S_HO}\ns_add_u32 s{S_T0}, s{S_T0}, {86*4096}")
        for k in range(4):
            a(f"s_waitcnt lgkmcnt({[8,6,2,0][k]})")
            vm.op(f"buffer_store_dwordx4 {vr(HF+4*k,4)}, v{VST}, {sr(R_WS,4)}, s{S_T0} offen {self.opt_s('hst','sc1')}", "st3")
            if k < 3: a(f"s_add_u32 s{S_T0}, s{S_T0}, 4096")
        stamp(10)
        vm.wait("st3"); flag(3)
        stamp(11)
        XV, DK, B2, GV, TM = 32, 40, 42, 64, 48
        VROW, VRD = T, T + 1
        a(f"v_lshrrev_b32 v{T+3}, 4, v0\nv_and_b32 v{T+4}, 1, v{T+3}\nv_lshlrev_b32 v{T+4}, 3, v{T+4}\nv_lshrrev_b32 v{T+5}, 1, v{T+3}\nv_add_u32 v{VROW}, v{T+4}, v{T+5}\nv_and_b32 v{T+6}, 15, v0")
        a(f"s_lshl_b32 s90, s{S_TT}, 7\ns_lshl_b32 s{S_T0}, s{S_TH}, 6\ns_add_u32 s90, s90, s{S_T0}\ns_lshr_b32 s{S_T0}, s{w}, 1\ns_lshl_b32 s{S_T0}, s{S_T0}, 5\ns_add_u32 s90, s90, s{S_T0}\ns_and_b32 s{S_T0}, s{w}, 1\ns_lshl_b32 s{S_T0}, s{S_T0}, 2\ns_add_u32 s90, s90, s{S_T0}")
        a(f"s_lshl_b32 s91, s90, 10\ns_lshl_b32 s{S_T0}, s{S_DN}, 7\ns_add_u32 s91, s91, s{S_T0}\nv_lshlrev_b32 v{T+4}, 10, v{VROW}\nv_lshl_add_u32 v{T+4}, v{T+6}, 3, v{T+4}\nv_lshl_add_u32 v{T+5}, v{T+6}, 3, s{S_T0}")
        roff = [16*(i & 1) + 2*(i >> 1) for i in range(4)]
        for i in range(4):
            a(f"s_add_u32 s{S_T1}, s91, {roff[i]*1024}")
            vm.op(f"buffer_load_dwordx2 {vr(XV+2*i,2)}, v{T+4}, {sr(R_X,4)}, s{S_T1} offen", "ep")
        vm.op(f"global_load_dwordx2 {vr(DK,2)}, v{T+5}, {sr(P_DSK,2)}", "ep")
        vm.op(f"global_load_dwordx2 {vr(B2,2)}, v{T+5}, {sr(P_B2,2)}", "ep")
        a(f"s_lshl_b32 s93, s90, 4\ns_add_u32 s93, s93, {WS_ST+8}\nv_lshlrev_b32 v{T+7}, 4, v{VROW}")
        for i in range(4): vm.op(f"buffer_load_dwordx2 {vr(GV+2*i,2)}, v{T+7}, {sr(R_WS,4)}, s93 offen offset:{roff[i]*16} sc1", "ep")
        a(f"s_lshr_b32 s{S_T0}, s{w}, 1\ns_mul_i32 s{S_T0}, s{S_T0}, {SLOT}\ns_and_b32 s{S_T1}, s{w}, 1\ns_mul_i32 s{S_T1}, s{S_T1}, {16*272}\ns_add_u32 s{S_T0}, s{S_T0}, s{S_T1}")
        a(f"v_mul_u32_u24 v{VRD}, 272, v{T+3}\nv_lshl_add_u32 v{VRD}, v{T+6}, 4, v{VRD}\nv_add_u32 v{VRD}, s{S_T0}, v{VRD}")
        a(f"v_lshlrev_b32 v{VROW}, 11, v{VROW}\nv_lshl_add_u32 v{VROW}, v{T+6}, 4, v{VROW}\ns_lshl_b32 s90, s90, 11\ns_lshl_b32 s{S_T0}, s{S_DN}, 8\ns_add_u32 s90, s90, s{S_T0}")
        a(f"s_mov_b32 s{S_T2}, {SPIN}")
        a.label("L_C_GW")
        a(f"s_waitcnt vmcnt(0)\ns_mov_b64 s[94:95], 0\ns_sub_u32 s{S_T2}, s{S_T2}, 1")
        for i in range(4): a(f"v_cmp_ne_u32 vcc, s{S_TAGG}, v{GV+2*i+1}\ns_or_b64 s[94:95], s[94:95], vcc")
        a(f"s_cmp_eq_u64 s[94:95], 0\ns_cbranch_scc1 L_C_GOK\ns_cmp_eq_u32 s{S_T2}, 0\ns_cbranch_scc1 L_C_GOK")
        for i in range(4): a(f"buffer_load_dwordx2 {vr(GV+2*i,2)}, v{T+7}, {sr(R_WS,4)}, s93 offen offset:{roff[i]*16} sc1")
        a("s_branch L_C_GW")
        a.label("L_C_GOK")
        vm.q = []
        DF, BF, XF = T + 8, T + 12, T + 16
        for k in range(2):
            a(f"v_lshlrev_b32 v{DF+2*k}, 16, v{DK+k}\nv_and_b32 v{DF+2*k+1}, 0xffff0000, v{DK+k}\nv_lshlrev_b32 v{BF+2*k}, 16, v{B2+k}\nv_and_b32 v{BF+2*k+1}, 0xffff0000, v{B2+k}")
        for i in range(4):
            g, om = GV + 2*i, T + 21
            a(f"v_sub_f32 v{om}, 1.0, v{g}")
            bf16r(om, om)
            for k in range(2):
                a(f"v_lshlrev_b32 v{XF+2*k}, 16, v{XV+2*i+k}\nv_and_b32 v{XF+2*k+1}, 0xffff0000, v{XV+2*i+k}")
                a(f"v_mul_f32 v{XF+2*k}, v{XF+2*k}, v{DF+2*k}\nv_mul_f32 v{XF+2*k+1}, v{XF+2*k+1}, v{DF+2*k+1}\nv_cvt_pk_bf16_f32 v{T+22}, v{XF+2*k}, v{XF+2*k+1}")
                a(f"v_lshlrev_b32 v{XF+2*k}, 16, v{T+22}\nv_and_b32 v{XF+2*k+1}, 0xffff0000, v{T+22}")
                for z in range(2):
                    a(f"v_mul_f32 v{TM+4*i+2*k+z}, v{BF+2*k+z}, v{om}\nv_fmac_f32 v{TM+4*i+2*k+z}, v{XF+2*k+z}, v{g}")
        stamp(12)
        a("s_barrier")
        stamp(13)
        PT = 64
        for i in range(4):
            for u in range(4): a(f"ds_read_b128 {vr(PT+16*i+4*u,4)}, v{VRD} offset:{u*PIECE_U+i*4*272}")
        for i in range(4):
            a(f"s_waitcnt lgkmcnt({12-4*i})")
            for u in range(4):
                for k in range(2): a(f"v_pk_add_f32 {vr(TM+4*i+2*k,2)}, {vr(TM+4*i+2*k,2)}, {vr(PT+16*i+4*u+2*k,2)}")
            a(f"s_add_u32 s{S_T1}, s90, {roff[i]*2048}")
            vm.op(f"buffer_store_dwordx4 {vr(TM+4*i,4)}, v{VROW}, {sr(R_OUT,4)}, s{S_T1} offen{' sc1' if self.opt.get('outsc1', 1) else ''}", "out")
        a(f"s_or_b32 s{S_T0}, s{S_J}, s{w}\ns_cmp_lg_u32 s{S_T0}, 0\ns_cbranch_scc1 L_C_DONE\ns_lshl_b32 s{S_T0}, s{S_TT}, 7\ns_add_u32 s{S_T0}, s{S_T0}, {WS_WG}")
        a(f"buffer_store_dword v{T+2}, v{VFL}, {sr(R_WS,4)}, s{S_T0} offen sc1")
        a.label("L_C_DONE")
        pr = self.opt.get("probe", 0)
        if pr:
            a(f"s_waitcnt vmcnt(0)\ns_mov_b32 s{R_WS+2}, 0x8000000\ns_lshl_b32 s{S_T0}, s2, 2\ns_add_u32 s{S_T0}, s{S_T0}, s{w}\ns_mul_i32 s{S_T0}, s{S_T0}, 20480\ns_add_u32 s{S_T0}, s{S_T0}, 0x2000000")
            if pr == 1:
                a(f"s_mov_b32 s{S_T1}, 500")
                a.label("L_PRB")
                a(f"s_nop 15\ns_nop 15\ns_sub_u32 s{S_T1}, s{S_T1}, 1\ns_cmp_lg_u32 s{S_T1}, 0\ns_cbranch_scc1 L_PRB")
            for i in range(20):
                if pr == 2: a(f"buffer_store_dwordx4 v[16:19], v{VL16}, {sr(R_WS,4)}, s{S_T0} offen sc1\ns_add_u32 s{S_T0}, s{S_T0}, 1024")
                if pr == 3: a(f"buffer_load_dwordx4 v[16:19], v{VL16}, {sr(R_WS,4)}, s{S_T0} offen sc1\ns_add_u32 s{S_T0}, s{S_T0}, 1024")
                if pr == 4: a(f"buffer_store_dwordx4 v[16:19], v{VL16}, {sr(R_WS,4)}, s{S_T0} offen\ns_add_u32 s{S_T0}, s{S_T0}, 1024")
            a("s_waitcnt vmcnt(0)")
        if self.prof:
            a("s_waitcnt vmcnt(0)"); stamp(14)
            a("s_memrealtime s[100:101]\ns_waitcnt lgkmcnt(0)\nv_writelane_b32 v3, s100, 62")
            self.prof_store()
        a("s_endpgm")
        a.label("L_CODE_END")

    def build(self):
        self.common(); self.loader(); self.compute()
        a = self.a
        msgs = check_hazards(a.lines, "linear")
        for l0, l1 in self.loops: msgs += check_hazards(a.lines[l0:l1] + a.lines[l0:l1], "loop")
        for m in msgs: print("HAZARD", m, file=sys.stderr)
        hdr = open("gated_mix__ssm_conv_s5__mixer_channel_mlp__prompt.s.ref").read().split("; Override")[0]
        out = hdr + "; Override launch geometry by editing the next line (default: block=256,\n; grid=ceil(out_elems/256), lds=0). Harness parses it; keep it on one line.\n"
        out += "; @launch grid=(256,1,1) block=(512,1,1) lds=163840\n"
        out += f'.amdgcn_target "amdgcn-amd-amdhsa--gfx950"\n.text\n.globl {KNAME}\n.p2align 8\n.type {KNAME},@function\n{KNAME}:\n'
        out += a.text()
        out += f""".section .rodata,"a"
.p2align 6
.amdhsa_kernel {KNAME}
  .amdhsa_next_free_vgpr 256
  .amdhsa_next_free_sgpr 102
  .amdhsa_accum_offset 256
  .amdhsa_group_segment_fixed_size 0
  .amdhsa_kernarg_size 144
  .amdhsa_user_sgpr_count 2
  .amdhsa_user_sgpr_kernarg_segment_ptr 1
  .amdhsa_system_sgpr_workgroup_id_x 1
.end_amdhsa_kernel
"""
        return out

if __name__ == "__main__":
    prof = "--prof" in sys.argv
    opt = {}
    for x in sys.argv[1:]:
        if x.startswith("--") and "=" in x:
            k, v = x[2:].split("="); opt[k] = int(v)
    out = [x for x in sys.argv[1:] if not x.startswith("--")]
    open(out[0], "w").write(G(prof, **opt).build())
```

```python
import sys, struct
from asmlib import *

KNAME = "gated_mix__ssm_conv_s5__mixer_channel_mlp__prompt_kernel"
def f2u(x): return struct.unpack("<I", struct.pack("<f", x))[0]
def fh(x): return "0x%08x" % f2u(x)

WS_HID = 0; HID_TT = 150*4096
WS_ST = 0xA00000; WS_SG = 0xA10000; WS_FL = 0xA40000; WS_WG = 0xA60000; WS_WC = 0xA61000; WS_USED = 0xA70000
WS_PROF = 0xB00000
SLOT = 36864; L_B = 16384; L_W1 = 24576; PIECE_U = 9216
L_E = 147456; L_CS = L_E + 4096; L_B1 = L_CS + 384; L_G2 = L_B1 + 384; L_H = L_G2 + 512; L_TR = L_H + 256
L_HF = L_TR + 4*2560
TRW = 2560
L_ST = L_TR
L_PW = L_TR + 512
assert L_HF + 16 <= 163840
OOB = 0x7ff00000
SPIN = 200000
S_WAVE, S_TT, S_J, S_U, S_TH, S_DN, S_CT0, S_NT, S_TAGG, S_TAGC = 3, 4, 5, 6, 7, 8, 9, 10, 11, 12
S_T0, S_T1, S_T2 = 13, 14, 15
P_X, P_LRE, P_LIM, P_BRE, P_BIM, P_CRE, P_CIM, P_LDT, P_DSK, P_BX, P_W1, P_B1, P_W2, P_B2, P_GW, P_OUT, P_DBG, P_WS = range(16, 52, 2)
R_X, R_B, R_W1, R_W2, R_CRE, R_CIM, R_WS, R_OUT = range(52, 84, 4)

class VM:
    def __init__(self, a): self.a = a; self.q = []; self.thr = None
    def op(self, text, tag=None):
        if self.thr is not None and len(self.q) > self.thr:
            self.a(f"s_waitcnt vmcnt({self.thr})"); self.q = self.q[len(self.q) - self.thr:]
        self.a(text); self.q.append(tag)
    def wait(self, tag):
        idx = [i for i, t in enumerate(self.q) if t == tag]
        if not idx: return
        n = len(self.q) - 1 - idx[-1]
        assert n <= 63, (tag, n)
        self.a(f"s_waitcnt vmcnt({n})"); self.q = self.q[idx[-1] + 1:]
    def drain(self): self.a("s_waitcnt vmcnt(0)"); self.q = []

class G:
    def __init__(self, prof=False, **opt):
        self.a = Asm(); self.prof = prof; self.opt = opt; self.loops = []
    def opt_s(self, k, d):
        v = self.opt.get(k)
        return d if v is None else {0: "", 1: "sc1", 2: "sc0 sc1", 3: "nt", 4: "sc1 nt", 5: "sc0"}[v]
    def stamp(self, idx):
        if self.prof: self.a(f"s_memtime s[100:101]\ns_waitcnt lgkmcnt(0)\nv_writelane_b32 v3, s100, {idx}")
    def prof_store(self):
        if self.prof:
            self.a(f"s_lshl_b32 s{S_T0}, s2, 3\ns_add_u32 s{S_T0}, s{S_T0}, s{S_WAVE}\ns_lshl_b32 s{S_T0}, s{S_T0}, 8\ns_add_u32 s{S_T0}, s{S_T0}, {WS_PROF}\nv_lshlrev_b32 v4, 2, v0\nbuffer_store_dword v3, v4, {sr(R_WS,4)}, s{S_T0} offen")
    def srd_ws(self):
        off = self.opt.get("wsoff", 0) << 20
        if off: self.a(f"s_add_u32 s{P_WS}, s{P_WS}, {off}\ns_addc_u32 s{P_WS+1}, s{P_WS+1}, 0")
        self.srd(R_WS, P_WS, WS_USED if not self.prof else 0xC00000)
    def srd(self, r, p, size):
        self.a(f"s_mov_b32 s{r}, s{p}\ns_mov_b32 s{r+1}, s{p+1}\ns_mov_b32 s{r+2}, {size}\ns_mov_b32 s{r+3}, 0x20000")
    def bf16r(self, d, s):
        self.a(f"v_cvt_pk_bf16_f32 v{d}, v{s}, v{s}\nv_and_b32 v{d}, 0xffff0000, v{d}")
    def csq(self, d, s, t):
        self.a(f"v_mul_f32 v{t}, v{s+1}, v{s+1}\nv_mul_f32 v{t+1}, v{s}, v{s+1}\nv_fma_f32 v{d}, v{s}, v{s}, -v{t}\nv_add_f32 v{d+1}, v{t+1}, v{t+1}")
    def horner(self, r, mu, e, rn):
        self.a(f"v_pk_fma_f32 {vr(rn,2)}, {vr(r,2)}, {vr(mu,2)}, {vr(e,2)} op_sel_hi:[1,0,1]")
        self.a(f"v_pk_fma_f32 {vr(rn,2)}, {vr(r,2)}, {vr(mu+2,2)}, {vr(rn,2)} op_sel:[1,0,0] op_sel_hi:[0,1,1]")
    def hprep(self, mu):
        self.a(f"v_sub_f32 v{mu+2}, 0, v{mu+1}\nv_mov_b32 v{mu+3}, v{mu+1}")
    def params(self, vin, LAM, T, COEF=None):
        a = self.a
        A_, B_, D_ = vin, vin + 1, vin + 2
        a(f"v_lshlrev_b32 v{D_}, 16, v{D_}\nv_lshlrev_b32 v{A_}, 16, v{A_}\nv_mul_f32 v{D_}, {fh(1.4426950408889634)}, v{D_}\nv_lshlrev_b32 v{B_}, 16, v{B_}")
        a(f"v_exp_f32 v{D_}, v{D_}\ns_nop 0")
        self.bf16r(D_, D_)
        a(f"v_mul_f32 v{T}, v{D_}, v{A_}\nv_mul_f32 v{T+1}, v{D_}, v{B_}")
        a(f"v_mul_f32 v{T}, {fh(1.4426950408889634)}, v{T}\nv_mul_f32 v{T+1}, 0.15915494, v{T+1}")
        a(f"v_exp_f32 v{T}, v{T}\nv_fract_f32 v{T+1}, v{T+1}\ns_nop 0\nv_cos_f32 v{T+2}, v{T+1}\nv_sin_f32 v{T+3}, v{T+1}\ns_nop 0")
        a(f"v_mul_f32 v{LAM}, v{T}, v{T+2}\nv_mul_f32 v{LAM+1}, v{T}, v{T+3}")
        if COEF is not None:
            a(f"v_mul_f32 v{T+4}, v{A_}, v{A_}\nv_add_f32 v{T}, -1.0, v{LAM}\nv_fmac_f32 v{T+4}, v{B_}, v{B_}")
            a(f"v_mul_f32 v{T+1}, v{T}, v{A_}\nv_rcp_f32 v{T+4}, v{T+4}\nv_mul_f32 v{T+2}, v{LAM+1}, v{A_}")
            a(f"v_fmac_f32 v{T+1}, v{LAM+1}, v{B_}\nv_fma_f32 v{T+2}, -v{T}, v{B_}, v{T+2}")
            a(f"v_mul_f32 v{COEF}, v{T+1}, v{T+4}\nv_mul_f32 v{COEF+1}, v{T+2}, v{T+4}")
    def tag_load(self, vm, v):
        self.a(f"s_lshl_b32 s{S_T0}, s{S_TT}, 7\ns_lshl_b32 s{S_T1}, s{S_J}, 7\ns_add_u32 s{S_T1}, s{S_T1}, {WS_WC-WS_WG}\ns_sub_u32 s{S_T1}, s{S_T1}, s{S_T0}")
        self.a(f"v_mul_lo_u32 v{v}, s{S_T1}, v2\ns_add_u32 s{S_T0}, s{S_T0}, {WS_WG}")
        vm.op(f"buffer_load_dword v{v}, v{v}, {sr(R_WS,4)}, s{S_T0} offen sc1", "st")
    def tag_make(self, v):
        self.a(f"v_readlane_b32 s{S_TAGG}, v{v}, 0\nv_readlane_b32 s{S_TAGC}, v{v}, 32")
        for sd in (S_TAGG, S_TAGC): self.a(f"s_mul_i32 s{sd}, s{sd}, 0x9e3779b1\ns_add_u32 s{sd}, s{sd}, 0x7f4a7c15")

    def common(self):
        a = self.a
        a(f"s_cmp_ge_u32 s2, 256\ns_cbranch_scc1 L_END")
        a("s_load_dwordx16 s[16:31], s[0:1], 0\ns_load_dwordx16 s[32:47], s[0:1], 64\ns_load_dwordx4 s[48:51], s[0:1], 128")
        if self.prof:
            a("v_mov_b32 v3, 0\ns_memrealtime s[98:99]\ns_memtime s[100:101]")
        a(f"v_lshrrev_b32 v1, 6, v0\nv_and_b32 v0, 63, v0\ns_lshr_b32 s{S_T1}, s2, 3\nv_readfirstlane_b32 s{S_WAVE}, v1")
        a(f"s_and_b32 s{S_J}, s{S_T1}, 7\ns_and_b32 s{S_T0}, s2, 1\ns_lshl_b32 s{S_T0}, s{S_T0}, 3\ns_add_u32 s{S_J}, s{S_J}, s{S_T0}")
        a(f"s_lshr_b32 s{S_T1}, s{S_T1}, 3\ns_and_b32 s{S_T0}, s2, 6\ns_lshl_b32 s{S_T0}, s{S_T0}, 1\ns_add_u32 s{S_TT}, s{S_T0}, s{S_T1}")
        a(f"s_and_b32 s{S_U}, s{S_WAVE}, 3\ns_bfe_u32 s{S_TH}, s{S_J}, 0x10002\ns_lshr_b32 s{S_DN}, s{S_J}, 3\ns_lshl_b32 s{S_DN}, s{S_DN}, 2\ns_and_b32 s{S_T1}, s{S_J}, 3\ns_add_u32 s{S_DN}, s{S_DN}, s{S_T1}")
        a(f"s_lshr_b32 s{S_T0}, s{S_J}, 2\ns_mul_i32 s{S_T0}, s{S_T0}, 11\ns_mul_i32 s{S_CT0}, s{S_T1}, 3\ns_add_u32 s{S_CT0}, s{S_CT0}, s{S_T0}\ns_min_u32 s{S_CT0}, s{S_CT0}, 41")
        a(f"s_cmp_eq_u32 s{S_T1}, 3\ns_cselect_b32 s{S_NT}, 2, 3\ns_cmp_eq_u32 s{S_J}, 14\ns_cselect_b32 s{S_NT}, 2, s{S_NT}")
        a("v_and_b32 v1, 31, v0\nv_lshrrev_b32 v2, 5, v0")
        a(f"s_cmp_lt_u32 s{S_WAVE}, 4\ns_cbranch_scc1 L_COMPUTE")
    def after_kernarg(self):
        a = self.a
        a("s_waitcnt lgkmcnt(0)")
        if self.prof: a("v_writelane_b32 v3, s98, 63\nv_writelane_b32 v3, s100, 0"); self.stamp(30)
        self.srd(R_X, P_X, 2048*1024)

    def loader(self):
        a = self.a; stamp = self.stamp; horner = self.horner; csq = self.csq
        vm = VM(a)
        u = S_U
        DX, DB, DW, DPF, DW2, VL16 = 4, 6, 8, 9, 10, 11
        VT, VC = 12, 16
        WQ = 24; ACC = 136; HB = 200
        MUL, NU, NU8 = 200, 204, 208
        CF, CA, ONES, VCS, DUM = 212, 228, 244, 246, 248
        S_XO, S_BO, S_WO, S_M0X, S_M0B, S_M0W, S_WO2, S_CC = 84, 85, 86, 87, 88, 89, 82, 83
        T = 136
        t_, p_ = T + 5, T + 6
        a(f"v_lshrrev_b32 v{t_}, 3, v0\nv_and_b32 v{p_}, 7, v0\nv_lshrrev_b32 v{T+7}, 1, v{t_}\nv_xor_b32 v{T+7}, v{T+7}, v{p_}\nv_lshlrev_b32 v{T+7}, 4, v{T+7}")
        a(f"v_lshrrev_b32 v{DX}, 2, v{t_}\nv_lshlrev_b32 v{DX}, 4, v{DX}\nv_and_b32 v{DX+1}, 1, v{t_}\nv_lshl_add_u32 v{DX}, v{DX+1}, 3, v{DX}\nv_bfe_u32 v{DW2}, v{t_}, 1, 1\nv_add_u32 v{DX}, v{DX}, v{DW2}")
        a(f"v_lshl_add_u32 v{DX}, v{DX}, 10, v{T+7}\nv_xor_b32 v{DX+1}, 64, v{DX}")
        a(f"s_lshl_b32 s{S_XO}, s{S_TT}, 2\ns_add_u32 s{S_XO}, s{S_XO}, s{u}\ns_lshl_b32 s{S_XO}, s{S_XO}, 15\ns_lshl_b32 s{S_M0X}, s{u}, 12")
        a(f"v_lshl_add_u32 v{DB}, v{t_}, 10, v{T+7}\nv_xor_b32 v{DB+1}, 64, v{DB}")
        a(f"s_lshl_b32 s{S_BO}, s{S_J}, 1\ns_and_b32 s{S_T0}, s{u}, 1\ns_add_u32 s{S_BO}, s{S_BO}, s{S_T0}\ns_lshl_b32 s{S_BO}, s{S_BO}, 14\ns_lshl_b32 s{S_M0B}, s{u}, 11")
        a(f"v_lshrrev_b32 v{DW}, 2, v0\nv_mul_u32_u24 v{DW}, 2752, v{DW}\nv_and_b32 v{T+7}, 3, v0\nv_lshl_add_u32 v{DW}, v{T+7}, 4, v{DW}")
        a(f"s_mul_i32 s{S_WO}, s{u}, {16*2752}\ns_lshl_b32 s{S_T1}, s{S_CT0}, 6\ns_add_u32 s{S_WO}, s{S_WO}, s{S_T1}\ns_mul_i32 s{S_M0W}, s{u}, 3072")
        a(f"s_lshl_b32 s{S_T1}, s{S_NT}, 6\ns_add_u32 s{S_WO2}, s{S_WO}, s{S_T1}\ns_sub_u32 s{S_WO2}, s{S_WO2}, 64")
        a(f"s_and_b32 s{S_CC}, s2, 6\ns_lshl_b32 s{S_T1}, s2, 2\ns_add_u32 s{S_CC}, s{S_CC}, s{S_T1}\ns_and_b32 s{S_CC}, s{S_CC}, {7 if self.opt.get('rot', 1) else 0}")
        a(f"s_lshl_b32 s{S_T1}, s{S_CC}, 7\ns_add_u32 s{S_XO}, s{S_XO}, s{S_T1}\ns_add_u32 s{S_BO}, s{S_BO}, s{S_T1}\ns_mul_i32 s{S_T1}, s{S_CC}, {64*2752}\ns_add_u32 s{S_WO}, s{S_WO}, s{S_T1}\ns_add_u32 s{S_WO2}, s{S_WO2}, s{S_T1}")
        self.after_kernarg()
        def next_chunk():
            a(f"s_add_u32 s{S_CC}, s{S_CC}, 1\ns_cmp_eq_u32 s{S_CC}, 8\ns_cselect_b32 s{S_T1}, -7, 1\ns_lshl_b32 s{S_T2}, s{S_T1}, 7\ns_mul_i32 s{S_T1}, s{S_T1}, {64*2752}")
            a(f"s_add_u32 s{S_XO}, s{S_XO}, s{S_T2}\ns_add_u32 s{S_BO}, s{S_BO}, s{S_T2}\ns_add_u32 s{S_WO}, s{S_WO}, s{S_T1}\ns_add_u32 s{S_WO2}, s{S_WO2}, s{S_T1}")
        seen = {"c0"}
        def dma(m0base, m0imm, sob, soimm, vaddr, rs, tag, fl=""):
            if tag[0] == "c" and tag not in seen: seen.add(tag); next_chunk()
            if m0base is None:
                a(f"s_add_u32 s{S_T0}, s{sob}, {soimm}")
                vm.op(f"buffer_load_dwordx4 {vr(DUM,4)}, v{vaddr}, {sr(rs,4)}, s{S_T0} offen", tag); return
            a(f"s_add_u32 m0, s{m0base}, {m0imm}\ns_add_u32 s{S_T0}, s{sob}, {soimm}")
            vm.op(f"buffer_load_dwordx4 v{vaddr}, {sr(rs,4)}, s{S_T0} offen {fl} lds", tag)
        def chunk(c):
            sl = (c % 4) * SLOT
            out = [(S_M0X, sl + 1024*i, S_XO, 2048*i, DX + (i & 1), R_X, f"c{c}") for i in range(4)]
            out += [(S_M0B, sl + L_B + 1024*i, S_BO, 8192*i, DB + i, R_B, f"c{c}") for i in range(2)]
            out += [(S_M0W, sl + L_W1 + 1024*n, S_WO2 if n == 2 else S_WO, (64*n if n < 2 else 0), DW, R_W1, f"c{c}") for n in range(3)]
            return out
        c0 = chunk(0)
        for d in c0[:4]: dma(*d)
        stamp(31)
        a(f"s_cmp_ge_u32 s{u}, 2\ns_cselect_b32 s{R_B}, s{P_BIM}, s{P_BRE}\ns_cselect_b32 s{R_B+1}, s{P_BIM+1}, s{P_BRE+1}\ns_mov_b32 s{R_B+2}, {512*1024}\ns_mov_b32 s{R_B+3}, 0x20000")
        for d in c0[4:6]: dma(*d)
        stamp(32)
        self.srd(R_W1, P_W1, 512*2752)
        for d in c0[6:] + chunk(1)[:3]: dma(*d)
        stamp(1)
        S_PU, S_W2, S_HD, S_W2C, S_HDC, S_HDD, S_CO, S_FP = 90, 91, 95, 99, 84, 85, 86, 87
        S_PFW, S_PFC = 16, 17
        a(f"v_lshlrev_b32 v{DW2}, 2, v{DW2}\nv_xor_b32 v{DW2}, v{DW2}, v{p_}\nv_lshlrev_b32 v{DW2}, 4, v{DW2}\nv_lshl_add_u32 v{DW2}, v{t_}, 10, v{DW2}")
        a(f"v_bfe_u32 v{T}, v0, 2, 2\nv_bfe_u32 v{T+2}, v0, 4, 1\nv_and_b32 v{T+3}, 3, v0\nv_lshlrev_b32 v{T+3}, 3, v{T+3}\nv_lshl_add_u32 v{T+3}, v{T+2}, 5, v{T+3}")
        a(f"v_lshl_add_u32 v{VCS}, v2, 3, v{T}\nv_lshlrev_b32 v{VCS}, 6, v{VCS}\ns_lshl_b32 s{S_T0}, s{u}, 10\ns_add_u32 s{S_T0}, s{S_T0}, {L_W1}\nv_add3_u32 v{VCS}, v{VCS}, v{T+3}, s{S_T0}\nv_add_u32 v{VCS+1}, {2*SLOT}, v{VCS}")
        a(f"v_mov_b32 v{ONES}, 0x3f803f80\nv_mov_b32 v{ONES+1}, 0x3f803f80")
        for r in range(CA, CA + 16, 2): a(f"v_mov_b64 {vr(r,2)}, 0")
        self.srd_ws(); self.srd(R_W2, P_W2, 1376*1024); self.srd(R_CRE, P_CRE, 512*1024); self.srd(R_CIM, P_CIM, 512*1024)
        a(f"s_mul_i32 s{S_PU}, s{u}, {PIECE_U}")
        a(f"v_lshl_add_u32 v{T+1}, v2, 2, v{T}\nv_lshl_add_u32 v{T+1}, v{T+1}, 7, v{T+3}\nv_lshrrev_b32 v{T}, 1, v{T}\nv_lshl_add_u32 v{T+1}, v{T}, 6, v{T+1}\nv_xor_b32 v{T+2}, 64, v{T+1}")
        a(f"v_add_u32 v{VT}, s{S_PU}, v{T+1}\nv_add_u32 v{VT+1}, s{S_PU}, v{T+2}\nv_add_u32 v{VT+2}, {2*SLOT}, v{VT}\nv_add_u32 v{VT+3}, {2*SLOT}, v{VT+1}")
        a(f"v_bfe_u32 v{T}, v1, 1, 3\nv_lshl_add_u32 v{T+1}, v1, 7, s{S_PU}")
        for s in range(4):
            a(f"v_add_u32 v{T+2}, {2*s}, v2\nv_xor_b32 v{T+2}, v{T+2}, v{T}\nv_lshl_add_u32 v{VC+s}, v{T+2}, 4, v{T+1}\nv_add_u32 v{VC+4+s}, {2*SLOT}, v{VC+s}")
        a(f"v_lshlrev_b32 v{VL16}, 4, v0\nv_lshlrev_b32 v{DPF}, 4, v1\nv_lshl_add_u32 v{DPF}, v2, 10, v{DPF}")
        a(f"s_mul_i32 s{S_T1}, s{S_TT}, {HID_TT}\ns_lshl_b32 s{S_T0}, s{S_TH}, 11\ns_add_u32 s{S_T1}, s{S_T1}, s{S_T0}\ns_lshl_b32 s{S_T2}, s{S_DN}, 7")
        for i in range(4):
            a(f"s_mul_i32 s{S_T0}, s{u}, 11\ns_add_u32 s{S_T0}, s{S_T0}, {3*i}")
            if i == 3: a(f"s_min_u32 s{S_T0}, s{S_T0}, 41")
            a(f"s_lshl_b32 s{S_W2+i}, s{S_T0}, 15\ns_add_u32 s{S_W2+i}, s{S_W2+i}, s{S_T2}\ns_lshl_b32 s{S_HD+i}, s{S_T0}, 13\ns_add_u32 s{S_HD+i}, s{S_HD+i}, s{S_T1}")
        a(f"s_cmp_eq_u32 s{u}, 3\ns_cselect_b32 s{S_W2C}, s{S_W2+1}, s{S_W2+2}")
        a(f"s_lshr_b32 s{S_T0}, s2, 3\ns_lshl_b32 s{S_T0}, s{S_T0}, 2\ns_add_u32 s{S_T0}, s{S_T0}, s{u}\ns_lshr_b32 s{S_T1}, s{S_J}, 3")
        a(f"s_mul_i32 s{S_PFW}, s{S_T0}, 43\ns_lshr_b32 s{S_PFW}, s{S_PFW}, 2\ns_min_u32 s{S_PFW}, s{S_PFW}, 1364\ns_lshl_b32 s{S_PFW}, s{S_PFW}, 10\ns_lshl_b32 s{S_T2}, s{S_T1}, 9\ns_add_u32 s{S_PFW}, s{S_PFW}, s{S_T2}")
        a(f"s_lshl_b32 s{S_PFC}, s{S_T1}, 7\ns_add_u32 s{S_PFC}, s{S_PFC}, s{S_T0}\ns_lshl_b32 s{S_PFC}, s{S_PFC}, 11")
        stamp(3)
        l2pf = [(None, 0, S_PFW, 2048*i, DPF, R_W2, "pf") for i in range(6)]
        l2pf += [(None, 0, S_PFC, 1024*i, VL16, r, "pf") for r in (R_CRE, R_CIM) for i in range(2)]
        if not self.opt.get("l2pf", 1): l2pf = []
        def cs_reads(c):
            sl = c % 4
            for k in range(8): a(f"ds_read_b64_tr_b16 {vr(CF+2*k,2)}, v{VCS+(sl>>1)} offset:{(sl&1)*SLOT+(k>>1)*3072+(k&1)*256}")
        def cs_mfma():
            a("s_waitcnt lgkmcnt(0)")
            for k in range(8): a(f"v_mfma_f32_4x4x4_16b_bf16 {vr(CA+4*(k&3),4)}, {vr(ONES,2)}, {vr(CF+2*k,2)}, {vr(CA+4*(k&3),4)}")
        steps = [("m", 0, k) for k in range(8)] + [("m", 1, k) for k in range(8)] + [("m", 2, k) for k in range(6)] + [("s", 3, k) for k in range(16)]
        groups = [(0, 4, 0), (4, 8, 1), (8, 12, 2), (12, 14, 3), (14, 18, 0), (18, 22, 1), (22, 26, 2), (26, 30, 3), (30, 34, 0), (34, 38, 1)]
        grp_of = {}
        for gi, (n0, n1, pc) in enumerate(groups):
            for n in range(n0, n1): grp_of[n] = gi
        def wdmas(gi):
            n0, n1, pc = groups[gi]; out = []
            if steps[n0][0] == "m":
                for n in range(n0, n1):
                    _, stage, k = steps[n]; i, step = k >> 1, k & 1
                    base = S_W2C if (stage == 2 and i == 2) else S_W2 + i
                    for h in range(2):
                        out.append((S_PU, pc*SLOT + (n - n0)*2048 + 1024*h, base, stage*32768 + step*16384 + 8192*h, DW2, R_W2, f"w{gi}"))
            else:
                dch = steps[n0][2] >> 2; b, part = dch >> 1, dch & 1
                for i in range(8):
                    out.append((S_PU, pc*SLOT + 1024*i, S_CO, 128*b + 8192*i, DB + (i & 1), R_CIM if part else R_CRE, f"w{gi}"))
            return out
        WR = 14
        def wreads(n):
            n0, n1, pc = groups[grp_of[n]]; kk = n - n0; hi = pc >> 1; po = (pc & 1) * SLOT; ws = WQ + 8*(n % WR)
            out = []
            if steps[n][0] == "m":
                for dt in range(2):
                    for q in range(2):
                        out.append(f"ds_read_b64_tr_b16 {vr(ws+4*dt+2*q,2)}, v{VT+2*hi+dt} offset:{po+kk*2048+q*1024}")
            else:
                for dt in range(2): out.append(f"ds_read_b128 {vr(ws+4*dt,4)}, v{VC+4*hi+kk} offset:{po+dt*4096}")
            return out
        seq = []
        for c in range(1, 8):
            ds = chunk(c)[3:] if c == 1 else chunk(c)
            seq += [(c - 3, d) for d in ds]
            pfs = self.opt.get('pfs', 4)
            seq += [(-1, d) for d in l2pf[pfs*(c - 1):pfs*c]]
        for gi in range(3): seq += [(5 + gi, d) for d in wdmas(gi)]
        AHEAD = self.opt.get("ahead", 11)
        pos = [0]
        def feed(b):
            while pos[0] < len(seq) and seq[pos[0]][0] <= b:
                if b < 7:
                    idx = [i for i, t in enumerate(vm.q) if t == f"c{b+1}"]
                    left = any(d[6] == f"c{b+1}" for _, d in seq[pos[0]:])
                    if not left and (not idx or len(vm.q) - 1 - idx[-1] >= AHEAD): break
                elif len(vm.q) >= self.opt.get("preX", 20): break
                dma(*seq[pos[0]][1]); pos[0] += 1
        feed(-1)
        stamp(2)
        for b in range(0, 8):
            vm.wait(f"c{b}"); a("s_barrier")
            stamp(16 + b)
            a(f"s_cmp_eq_u32 s{u}, 3\ns_cbranch_scc1 L_L_CR{b}")
            cs_reads(b)
            if b == 0:
                a("s_branch L_L_CS0")
                a.label("L_L_CR0")
                a(f"s_lshl_b32 s{S_T1}, s{S_J}, 6\nv_lshl_add_u32 v{T}, v1, 1, s{S_T1}\ns_lshl_b32 s{S_T1}, s{S_NT}, 4\ns_sub_u32 s{S_T1}, s{S_T1}, 1\nv_min_u32 v{T+1}, s{S_T1}, v0\ns_lshl_b32 s{S_T1}, s{S_CT0}, 6\nv_lshl_add_u32 v{T+1}, v{T+1}, 2, s{S_T1}")
                a(f"global_load_ushort v{T+4}, v{T}, {sr(P_LRE,2)}\nglobal_load_ushort v{T+5}, v{T}, {sr(P_LIM,2)}\nglobal_load_ushort v{T+6}, v{T}, {sr(P_LDT,2)}\nglobal_load_dword v{T+7}, v{T+1}, {sr(P_B1,2)}")
                a.label("L_L_CS0")
            else: a.label(f"L_L_CR{b}")
            if b == 4:
                a(f"s_lshl_b32 s{S_T1}, s{S_TT}, 2\ns_add_u32 s{S_T1}, s{S_T1}, s{u}\ns_lshl_b32 s{S_T1}, s{S_T1}, 9\ns_mul_i32 s{S_T2}, s{u}, {TRW}\ns_mov_b32 exec_hi, 0")
                dma(S_T2, L_ST, S_T1, WS_ST, VL16, R_WS, "stat", "sc1")
                a("s_mov_b32 exec_hi, -1")
            if b == 5:
                a(f"v_mov_b32 v{T+24}, {L_HF}\nds_read_b64 {vr(T+26,2)}, v{T+24} offset:8")
            if b == 0: assert any(d[6] == "c2" for _, d in seq[pos[0]:])
            if b < 7: feed(b)
            if b == 5: a(f"s_waitcnt lgkmcnt(0)\nv_readfirstlane_b32 s{S_TAGG}, v{T+26}\nv_readfirstlane_b32 s{S_TAGC}, v{T+27}")
            a(f"s_cmp_eq_u32 s{u}, 3\ns_cbranch_scc1 L_L_CM{b}")
            cs_mfma()
            if b == 7:
                a(f"s_lshl_b32 s{S_T0}, s{u}, 7\ns_add_u32 s{S_T0}, s{S_T0}, {L_CS}\nv_lshl_add_u32 v{CF}, v1, 2, s{S_T0}\ns_nop 1")
                a(f"v_add_f32 v{CA}, v{CA}, v{CA+4}\nv_add_f32 v{CA+8}, v{CA+8}, v{CA+12}\nv_add_f32 v{CA}, v{CA}, v{CA+8}\nv_mov_b32 v{CA+1}, v{CA}\ns_nop 1")
                a(f"v_permlane32_swap_b32 v{CA}, v{CA+1}\nv_add_f32 v{CA}, v{CA}, v{CA+1}\nds_write_b32 v{CF}, v{CA}")
            if b == 2:
                a("s_branch L_L_CN1")
                a.label("L_L_CM2")
                LAM, COEF, P1 = T + 16, T + 18, T + 20
                self.params(T + 4, LAM, T + 8, COEF)
                csq(MUL, LAM, T+8); csq(P1, MUL, T+8); csq(MUL, P1, T+8)
                a(f"v_lshlrev_b32 v{T}, 3, v1\nv_add_u32 v{T}, {L_PW}, v{T}\nds_write_b64 v{T}, {vr(LAM,2)}\nds_write_b64 v{T}, {vr(COEF,2)} offset:{TRW}\nds_write_b64 v{T}, {vr(MUL,2)} offset:{2*TRW}")
                a(f"v_lshlrev_b32 v{T+8}, 16, v{T+7}\nv_and_b32 v{T+9}, 0xffff0000, v{T+7}\nv_min_u32 v{T}, 47, v0\nv_lshlrev_b32 v{T}, 3, v{T}\nv_add_u32 v{T}, {L_B1}, v{T}\ns_mov_b32 exec_hi, 0xffff\nds_write_b64 v{T}, {vr(T+8,2)}\ns_mov_b32 exec_hi, -1")
                a.label("L_L_CN1")
            elif b == 3:
                a("s_branch L_L_CN2")
                a.label("L_L_CM3")
                csq(NU, MUL, T+8); csq(P1, NU, T+8); csq(NU8, P1, T+8); csq(NU, NU8, T+8)
                csq(NU8, NU, T+8); csq(P1, NU8, T+8); csq(NU8, P1, T+8)
                self.hprep(MUL); self.hprep(NU); self.hprep(NU8)
                a("s_waitcnt lgkmcnt(0)")
                a.label("L_L_CN2")
            else: a.label(f"L_L_CM{b}")
        feed(7)
        rest = [d for _, d in seq[pos[0]:]]
        stamp(5)
        a(f"s_cmp_eq_u32 s{u}, 3\ns_cselect_b32 s{S_HDC}, s{S_HD+1}, s{S_HD+2}")
        a(f"s_mul_i32 s{S_HDD}, s{S_TT}, {HID_TT}\ns_lshl_b32 s{S_T0}, s{S_TH}, 11\ns_add_u32 s{S_HDD}, s{S_HDD}, s{S_T0}\ns_lshl_b32 s{S_T0}, s{u}, 16\ns_add_u32 s{S_HDD}, s{S_HDD}, s{S_T0}\ns_add_u32 s{S_HDD}, s{S_HDD}, {86*4096}")
        a(f"s_lshl_b32 s{S_CO}, s{S_DN}, 16\ns_lshl_b32 s{S_T0}, s{u}, 8\ns_add_u32 s{S_CO}, s{S_CO}, s{S_T0}")
        a(f"s_lshl_b32 s{S_FP}, s{S_TT}, 2\ns_add_u32 s{S_FP}, s{S_FP}, s{u}\ns_lshl_b32 s{S_FP}, s{S_FP}, 1\ns_add_u32 s{S_FP}, s{S_FP}, s{S_TH}\ns_lshl_b32 s{S_FP}, s{S_FP}, 9\ns_add_u32 s{S_FP}, s{S_FP}, {WS_FL}")
        a("s_waitcnt lgkmcnt(0)\ns_barrier")
        stamp(6)
        EE, RA, RB = T + 8, T + 4, T + 6
        a(f"s_cmp_lg_u32 s{u}, 3\ns_cbranch_scc1 L_L_NOPUB")
        a(f"v_lshlrev_b32 v{T}, 4, v1\nv_add_u32 v{T+1}, {L_E}, v{T}")
        for k in range(8): a(f"ds_read_b128 {vr(EE+4*k,4)}, v{T+1} offset:{k*512}")
        a(f"s_lshl_b32 s{S_T1}, s{S_J}, 4\ns_add_u32 s{S_T1}, s{S_T1}, s{S_TT}\ns_lshl_b32 s{S_T1}, s{S_T1}, 9\ns_add_u32 s{S_T1}, s{S_T1}, {WS_SG}")
        cur = EE; nx = RA
        for sg in range(1, 16):
            if sg % 2 == 0 or sg == 1: a(f"s_waitcnt lgkmcnt({7 - sg//2})")
            horner(cur, MUL, EE + 2*sg, nx); cur = nx; nx = RB if nx == RA else RA
        assert cur == RA
        a(f"v_mov_b32 v{RA+2}, s{S_TAGC}\nv_mov_b32 v{RA+3}, s{S_TAGC}")
        a(f"buffer_store_dwordx4 {vr(RA,4)}, v{T}, {sr(R_WS,4)}, s{S_T1} offen sc1")
        stamp(24)
        a.label("L_L_NOPUB")
        def lookback():
            a(f"s_cmp_lg_u32 s{u}, 3\ns_cbranch_scc1 L_L_LBE")
            VO, VX_, LB = T + 8, T + 16, T + 32
            a(f"s_sub_u32 s{S_T2}, s{S_TT}, 1\nv_lshlrev_b32 v{T+1}, 3, v2\nv_sub_u32 v{T+1}, s{S_T2}, v{T+1}\nv_lshl_add_u32 v{T+2}, v{T+1}, 9, v{T}\nv_mov_b32 v{T+3}, {OOB}\nv_mov_b32 v{T+24}, s{S_TAGC}")
            for i in range(8):
                a(f"v_cmp_le_i32 vcc, {i}, v{T+1}\nv_subrev_u32 v{VO+i}, {512*i}, v{T+2}\ns_nop 0\nv_cndmask_b32 v{VO+i}, v{T+3}, v{VO+i}, vcc\nv_cndmask_b32 v{VX_+i}, 0, v{T+24}, vcc")
            a(f"s_lshl_b32 s{S_T1}, s{S_J}, 13\ns_add_u32 s{S_T1}, s{S_T1}, {WS_SG}\ns_mov_b32 s{S_T2}, {SPIN}")
            a.label("L_L_LB")
            for i in range(8): a(f"buffer_load_dwordx4 {vr(LB+4*i,4)}, v{VO+i}, {sr(R_WS,4)}, s{S_T1} offen sc1")
            a(f"s_mov_b64 s[88:89], 0\ns_sub_u32 s{S_T2}, s{S_T2}, 1\ns_waitcnt vmcnt(0)")
            for i in range(8): a(f"v_cmp_ne_u32 vcc, v{LB+4*i+2}, v{VX_+i}\ns_or_b64 s[88:89], s[88:89], vcc")
            a(f"s_cmp_eq_u32 s{S_T2}, 0\ns_cbranch_scc1 L_L_LBOK\ns_cmp_lg_u64 s[88:89], 0\ns_cbranch_scc1 L_L_LB")
            a.label("L_L_LBOK")
            cur = LB + 28; nx = RA
            for i in range(6, -1, -1):
                horner(cur, NU, LB + 4*i, nx); cur = nx; nx = RB if nx == RA else RA
            assert cur == RA
            a(f"v_mov_b32 v{RB}, v{RA}\nv_mov_b32 v{RB+1}, v{RA+1}\ns_nop 1\nv_permlane32_swap_b32 v{RA}, v{RB}\nv_permlane32_swap_b32 v{RA+1}, v{RB+1}\ns_nop 0")
            horner(RB, NU8, RA, EE)
            a(f"v_lshlrev_b32 v{T+1}, 3, v1\nv_add_u32 v{T+1}, {L_H}, v{T+1}\nv_mov_b32 v{T+2}, {L_HF}\nv_mov_b32 v{T+3}, 1\nds_write_b64 v{T+1}, {vr(EE,2)}\nds_write_b32 v{T+2}, v{T+3}")
            a(f"s_cmp_lg_u32 s{S_TT}, 15\ns_cbranch_scc1 L_L_LBE\ns_lshl_b32 s{S_T1}, s{S_J}, 7\ns_add_u32 s{S_T1}, s{S_T1}, {WS_WC}\nv_mov_b32 v{T}, 0")
            a(f"buffer_store_dword v{T+24}, v{T}, {sr(R_WS,4)}, s{S_T1} offen sc1")
            a.label("L_L_LBE")
            stamp(8)
        vm.thr = self.opt.get('thr', None)
        for d in rest + wdmas(3): dma(*d)
        lbpos = self.opt.get("lbpos", 2)
        for gi in range(4):
            if gi == lbpos: lookback()
            vm.wait(f"w{gi}")
            for n in range(groups[gi][0], groups[gi][1]):
                for l in wreads(n): a(l)
            a("s_waitcnt lgkmcnt(0)")
            for d in wdmas(4 + gi): dma(*d)
        if lbpos == 4: lookback()
        stamp(7)
        RING = 7; DIST = 6
        PF = 16
        a(f"s_add_u32 s24, s{P_WS}, s{S_FP}\ns_addc_u32 s25, s{P_WS+1}, 0\ns_mov_b32 s26, s{S_TAGG}\ns_mov_b32 s27, s{S_TAGG}")
        lg = []
        VP = self.opt.get("vpoll", 0); VPOLL, VPR = 4, 5
        a(f"v_and_b32 v{VPOLL}, 7, v0\nv_lshlrev_b32 v{VPOLL}, 2, v{VPOLL}")
        def poll_issue(stage):
            if VP >> stage & 1: vm.op(f"buffer_load_dword v{VPR}, v{VPOLL}, {sr(R_WS,4)}, s{S_FP} offen offset:{stage*128} sc1", f"p{stage}")
            else: a(f"s_load_dwordx8 s[16:23], s[24:25], {stage*128} glc")
        def poll_check(stage):
            if VP >> stage & 1:
                vm.wait(f"p{stage}")
                a(f"v_cmp_ne_u32 vcc, s{S_TAGG}, v{VPR}\ns_mov_b32 s{S_T2}, {SPIN}\ns_nop 0\ns_cbranch_vccz L_L_Q{stage}")
                a.label(f"L_L_P{stage}")
                a(f"buffer_load_dword v{VPR}, v{VPOLL}, {sr(R_WS,4)}, s{S_FP} offen offset:{stage*128} sc1\ns_sub_u32 s{S_T2}, s{S_T2}, 1\ns_waitcnt vmcnt(0)")
                a(f"v_cmp_ne_u32 vcc, s{S_TAGG}, v{VPR}\ns_cmp_eq_u32 s{S_T2}, 0\ns_cbranch_scc1 L_L_Q{stage}\ns_cbranch_vccnz L_L_P{stage}")
                a.label(f"L_L_Q{stage}")
                stamp(9 + stage); return
            a(f"s_mov_b32 s{S_T2}, {SPIN}")
            a.label(f"L_L_P{stage}")
            a("s_waitcnt lgkmcnt(0)")
            for k in range(4): a(f"s_xor_b64 s[{16+2*k}:{17+2*k}], s[{16+2*k}:{17+2*k}], s[26:27]")
            a("s_or_b64 s[16:17], s[16:17], s[18:19]\ns_or_b64 s[20:21], s[20:21], s[22:23]\ns_or_b64 s[16:17], s[16:17], s[20:21]")
            a(f"s_cbranch_scc0 L_L_Q{stage}\ns_sub_u32 s{S_T2}, s{S_T2}, 1\ns_cbranch_scc1 L_L_Q{stage}")
            poll_issue(stage)
            a(f"s_branch L_L_P{stage}")
            a.label(f"L_L_Q{stage}")
            del lg[:]
            stamp(9 + stage)
        def hid_load(n):
            kind, stage, k = steps[n]
            if kind == "m":
                i, step = k >> 1, k & 1
                base = S_HDC if (stage == 2 and i == 2) else S_HD + i
                imm = stage*8192 + step*4096
            else:
                dch, s = k >> 2, k & 3; b, part = dch >> 1, dch & 1
                base = S_HDD; imm = (8*b + 4*(s >> 1) + 2*part + (s & 1)) * 4096
            a(f"s_add_u32 s{S_T0}, s{base}, {imm}")
            for tw in range(2):
                vm.op(f"buffer_load_dwordx4 {vr(HB+8*(n%RING)+4*tw,4)}, v{VL16}, {sr(R_WS,4)}, s{S_T0} offen offset:{tw*1024} {self.opt_s('hld','sc1')}", f"h{n}")
        N = len(steps)
        first = {8: 1, 16: 2, 22: 3}
        pi = {self.opt.get("piB", -1): 1, self.opt.get("piC", 6): 2, self.opt.get("piD", 12): 3}
        pc = {1: self.opt.get("pcB", 2), 2: self.opt.get("pcC", 10), 3: self.opt.get("pcD", 16)}
        refill = {}
        for gi, n_from in ((8, self.opt.get('rf0', 5)), (9, self.opt.get('rf1', 9))):
            ds = wdmas(gi)
            for k in range(0, len(ds), 2): refill[n_from + k//2] = ds[k:k+2]
        poll_issue(0); poll_check(0)
        issued = 0; spoll = [False]
        def issue_to(m_to, n):
            nonlocal issued
            while issued < min(m_to, N):
                if issued in first:
                    if n < pc[first[issued]]: return
                    poll_check(first[issued]); spoll[0] = False
                hid_load(issued); issued += 1
        issue_to(7, -1)
        if -1 in pi: poll_issue(pi[-1]); spoll[0] = True
        def mfma(n, dt, tw):
            A = ACC + 32*tw + 16*dt
            return f"v_mfma_f32_32x32x16_bf16 {vr(A,16)}, {vr(WQ+8*(n%WR)+4*dt,4)}, {vr(HB+8*(n%RING)+4*tw,4)}, {vr(A,16) if n else 0}"
        TAILN = 4
        for n in range(N - TAILN):
            vm.wait(f"h{n}")
            if n in lg:
                k = len(lg) - 1 - max(i for i, x in enumerate(lg) if x == n)
                a(f"s_waitcnt lgkmcnt({0 if spoll[0] else min(k,15)})")
                lg[:] = lg[len(lg) - k:]
            dummy = n in (20, 21)
            if dummy: a(f"s_cmp_eq_u32 s{u}, 3\ns_cbranch_scc1 L_L_SK{n}")
            for dt, tw in ((0, 0), (0, 1), (1, 0), (1, 1)): a(mfma(n, dt, tw))
            if dummy: a.label(f"L_L_SK{n}")
            if n + WR < N:
                vm.wait(f"w{grp_of[n+WR]}")
                for l in wreads(n + WR): a(l); lg.append(n + WR)
            if n == self.opt.get("thr_off", 14): vm.thr = None
            if n in pi: poll_issue(pi[n]); spoll[0] = True
            issue_to(n + 1 + DIST, n)
            if n in refill:
                gi = int(refill[n][0][6][1:]); prev = max(g for g in range(gi) if groups[g][2] == groups[gi][2])
                last = groups[prev][1] - 1
                if any(x <= last for x in lg):
                    k = len(lg) - 1 - max(i for i, x in enumerate(lg) if x <= last)
                    a(f"s_waitcnt lgkmcnt({0 if spoll[0] else min(k,15)})"); lg[:] = lg[len(lg) - k:]
                for d in refill[n]: dma(*d)
            if n in (7, 15, 21, 29): stamp(25 + (7, 15, 21, 29).index(n))
        VRED = VT
        a(f"v_mul_u32_u24 v{VRED}, 272, v1\nv_lshl_add_u32 v{VRED}, v2, 4, v{VRED}\nv_add_u32 v{VRED}, s{S_PU}, v{VRED}\ns_waitcnt lgkmcnt(0)")
        order = ((0, 0), (1, 0), (0, 1), (1, 1))
        def wr(dt, tw, jj): return f"ds_write_b128 v{VRED}, {vr(ACC+32*tw+16*dt+4*jj,4)} offset:{tw*SLOT+dt*128+jj*32}"
        for ti, (dt, tw) in enumerate(order):
            for k, n in enumerate(range(N - TAILN, N)):
                if ti == 0: vm.wait(f"h{n}")
                a(mfma(n, dt, tw))
                if ti >= 2 or (ti == 1 and False):
                    a(wr(*order[ti - 2], k))
        stamp(13)
        for jj in range(4): a(wr(*order[2], jj))
        a("s_nop 7")
        for jj in range(4): a(wr(*order[3], jj))
        a("s_waitcnt lgkmcnt(0)")
        stamp(14)
        a("s_barrier")
        self.prof_store()
        a.label("L_END")
        a("s_endpgm")

    def compute(self):
        a = self.a; stamp = self.stamp; horner = self.horner; csq = self.csq; bf16r = self.bf16r
        a.label("L_COMPUTE")
        URE, UIM, AM = 16, 32, [48, 64, 80]
        FS = [108, 132]
        VX, VA, VW = 156, 160, 164
        LAM, LI, COEF, CI, MU, ONES = 96, 98, 100, 102, 168, 174
        SM, SR, SQ = 176, 166, 178
        VL16, VFL, VHH, VE = 180, 181, 182, 183
        T = 184
        S_C, S_DELTA, S_K, S_HO, S_FLO, S_M3 = 84, 85, 86, 88, 89, 92
        vm = VM(a)
        w = S_WAVE
        X0, G0 = 108, 116
        a(f"s_lshl_b32 s{S_T0}, s{S_TT}, 4\ns_add_u32 s{S_T0}, s{S_T0}, s{S_J}\ns_lshl_b32 s{S_T0}, s{S_T0}, 2\ns_add_u32 s{S_T0}, s{S_T0}, s{w}\ns_lshl_b32 s90, s{S_T0}, 5\ns_lshl_b32 s{S_T2}, s{S_T0}, 11")
        a(f"v_lshlrev_b32 v{VL16}, 4, v0")
        if self.opt.get("ipf", 1):
            a(f"s_cmp_lg_u32 s{w}, 0\ns_cbranch_scc1 L_C_NOPF\ns_getpc_b64 s[92:93]")
            a.label("L_PC")
            a(f"s_lshr_b32 s{S_T0}, s2, 3\nv_and_b32 v{T+10}, 7, v0\nv_lshl_add_u32 v{T+10}, s{S_T0}, 3, v{T+10}")
            a(f"v_lshlrev_b32 v{T+10}, 7, v{T+10}\nv_min_u32 v{T+10}, L_CODE_END-{KNAME}-4, v{T+10}\ns_sub_u32 s92, s92, L_PC-{KNAME}\ns_subb_u32 s93, s93, 0")
            a(f"v_mov_b32 v{T+11}, s93\nv_add_co_u32 v{T+10}, vcc, s92, v{T+10}\ns_nop 1\nv_addc_co_u32 v{T+11}, vcc, 0, v{T+11}, vcc")
            a(f"global_load_dword v{T+15}, {vr(T+10,2)}, off")
            a.label("L_C_NOPF")
        self.after_kernarg()
        vm.op(f"buffer_load_dwordx4 {vr(X0,4)}, v{VL16}, {sr(R_X,4)}, s{S_T2} offen", "st")
        vm.op(f"buffer_load_dwordx4 {vr(X0+4,4)}, v{VL16}, {sr(R_X,4)}, s{S_T2} offen offset:1024", "st")
        vm.op(f"global_load_dwordx4 {vr(G0,4)}, v{VL16}, {sr(P_GW,2)}", "st")
        self.srd_ws(); self.tag_load(vm, 165)
        stamp(1)
        self.srd(R_OUT, P_OUT, 2048*2048)
        a(f"v_bfe_u32 v{T+8}, v1, 1, 3\nv_lshlrev_b32 v{T+9}, 7, v1")
        a(f"v_bfe_u32 v{T+10}, v0, 2, 2\nv_lshl_add_u32 v{T+10}, v2, 3, v{T+10}\nv_lshlrev_b32 v{T+10}, 6, v{T+10}")
        a(f"v_bfe_u32 v{T+11}, v0, 4, 1\nv_lshl_add_u32 v{T+10}, v{T+11}, 5, v{T+10}\nv_and_b32 v{T+11}, 3, v0\nv_lshl_add_u32 v{T+10}, v{T+11}, 3, v{T+10}")
        a(f"s_lshl_b32 s{S_T2}, s{w}, 12")
        for s in range(4):
            a(f"v_add_u32 v{T+11}, {2*s}, v2\nv_xor_b32 v{T+11}, v{T+11}, v{T+8}\nv_lshl_add_u32 v{VA+s}, v{T+11}, 4, v{T+9}\nv_add_u32 v{VX+s}, s{S_T2}, v{VA+s}")
        a(f"v_add_u32 v{VW}, {L_W1}, v{T+10}")
        for r in range(16, 96, 2): a(f"v_mov_b64 {vr(r,2)}, 0")
        a(f"v_mov_b32 v{ONES}, 0x3f803f80\nv_mov_b32 v{ONES+1}, 0x3f803f80")
        a(f"v_lshlrev_b32 v{VHH}, 4, v2")
        a(f"v_mov_b32 v{VFL}, {OOB}\nv_cmp_eq_u32 vcc, 0, v0\ns_mov_b32 s{S_K}, {fh(-2.302208198*0.044715)}\ns_mov_b32 s{S_K+1}, {fh(-2.302208198)}\nv_cndmask_b32 v{VFL}, v{VFL}, v0, vcc")
        a(f"s_lshl_b32 s{S_T0}, s{w}, 10\nv_lshl_add_u32 v{VE}, v2, 9, s{S_T0}\nv_lshl_add_u32 v{VE}, v1, 4, v{VE}")
        a(f"s_mul_i32 s{S_HO}, s{S_TT}, {HID_TT}\ns_lshl_b32 s{S_T0}, s{w}, 10\ns_add_u32 s{S_HO}, s{S_HO}, s{S_T0}")
        a(f"s_lshr_b32 s{S_T0}, s{S_J}, 2\ns_lshl_b32 s{S_T1}, s{S_TT}, 2\ns_add_u32 s{S_T0}, s{S_T0}, s{S_T1}\ns_lshl_b32 s{S_T0}, s{S_T0}, 1\ns_lshr_b32 s{S_T1}, s{w}, 1\ns_add_u32 s{S_T0}, s{S_T0}, s{S_T1}\ns_lshl_b32 s{S_FLO}, s{S_T0}, 9")
        a(f"s_and_b32 s{S_T0}, s{S_J}, 3\ns_lshl_b32 s{S_T0}, s{S_T0}, 1\ns_and_b32 s{S_T1}, s{w}, 1\ns_add_u32 s{S_T0}, s{S_T0}, s{S_T1}\ns_lshl_b32 s{S_T0}, s{S_T0}, 2\ns_add_u32 s{S_FLO}, s{S_FLO}, s{S_T0}\ns_add_u32 s{S_FLO}, s{S_FLO}, {WS_FL}")
        vm.wait("st")
        stamp(2)
        self.tag_make(165)
        F, GF, PB = T + 16, T + 32, T + 40
        SS = T + 8
        for k in range(6): a(f"v_mov_b32 v{SS+k}, 0")
        for i in range(4): a(f"v_lshlrev_b32 v{GF+2*i}, 16, v{G0+i}\nv_and_b32 v{GF+2*i+1}, 0xffff0000, v{G0+i}")
        for i in range(8): a(f"v_lshlrev_b32 v{F+2*i}, 16, v{X0+i}\nv_and_b32 v{F+2*i+1}, 0xffff0000, v{X0+i}")
        for i in range(8): a(f"v_pk_mul_f32 {vr(F+2*i,2)}, {vr(F+2*i,2)}, {vr(GF+2*(i&3),2)}")
        for i in range(8): a(f"v_cvt_pk_bf16_f32 v{PB+i}, v{F+2*i}, v{F+2*i+1}")
        for i in range(4):
            for r in range(2):
                a(f"v_dot2_f32_bf16 v{SS+3*r}, v{X0+4*r+i}, v{ONES}, v{SS+3*r}\nv_dot2_f32_bf16 v{SS+3*r+1}, v{X0+4*r+i}, v{X0+4*r+i}, v{SS+3*r+1}\nv_dot2_f32_bf16 v{SS+3*r+2}, v{PB+4*r+i}, v{ONES}, v{SS+3*r+2}")
        a("s_nop 1")
        for k in range(3): a(f"v_permlane32_swap_b32 v{SS+k}, v{SS+3+k}")
        s1, s3, s2 = SS, SS + 1, SS + 2
        rs = [s1, s3, s2]
        for k in range(3): a(f"v_add_f32 v{SS+k}, v{SS+k}, v{SS+3+k}")
        for m in ("quad_perm:[1,0,3,2]", "quad_perm:[2,3,0,1]", "row_half_mirror", "row_mirror"):
            for r in rs: a(f"v_add_f32_dpp v{r}, v{r}, v{r} {m} row_mask:0xf bank_mask:0xf")
        for k, r in enumerate(rs): a(f"v_mov_b32 v{PB+k}, v{r}")
        for k, r in enumerate(rs): a(f"v_permlane16_swap_b32 v{r}, v{PB+k}")
        for k, r in enumerate(rs): a(f"v_add_f32 v{r}, v{r}, v{PB+k}")
        GR = T + 16
        a(f"v_mul_f32 v{s1}, {fh(1/512)}, v{s1}\nv_mul_f32 v{s3}, {fh(1/512)}, v{s3}")
        bf16r(s2, s2)
        a(f"v_fma_f32 v{s3}, -v{s1}, v{s1}, v{s3}\nv_mul_f32 v{s2}, {fh(-1.4426950408889634)}, v{s2}\nv_max_f32 v{s3}, 0, v{s3}\nv_exp_f32 v{s2}, v{s2}")
        bf16r(s3, s3); bf16r(GR, s1)
        a(f"v_add_f32 v{s3}, {fh(1e-5)}, v{s3}\nv_add_f32 v{s2}, 1.0, v{s2}")
        bf16r(s3, s3)
        a(f"v_rcp_f32 v{s2}, v{s2}\nv_sqrt_f32 v{s3}, v{s3}")
        bf16r(GR+2, s2); bf16r(s3, s3)
        a(f"v_mov_b32 v{GR+3}, s{S_TAGG}\nv_rcp_f32 v{GR+1}, v{s3}")
        a(f"v_mov_b32 v{s1}, {OOB}\nv_cmp_eq_u32 vcc, 0, v1\nv_lshlrev_b32 v{s2}, 4, v2\ns_add_u32 s90, s90, {WS_ST}\nv_cndmask_b32 v{s1}, v{s1}, v{s2}, vcc")
        vm.op(f"buffer_store_dwordx4 {vr(GR,4)}, v{s1}, {sr(R_WS,4)}, s90 offen sc1", "sts")
        a(f"v_mov_b32 v{T+8}, 0\nv_mov_b32 v{T+9}, 0\nv_mov_b32 v{T+10}, s{S_TAGG}\nv_mov_b32 v{T+11}, s{S_TAGC}\nv_mov_b32 v{T+1}, {L_HF}\nds_write_b128 v{T+1}, {vr(T+8,4)}")
        a(f"s_mov_b32 s{S_C}, 0\ns_mov_b32 s91, {SLOT}\ns_mov_b32 s{S_M3}, 0\ns_waitcnt lgkmcnt(0)")
        stamp(15)
        a("s_barrier")
        stamp(16)

        def rd(set_, s, which):
            F = FS[set_]
            if which == 0: return f"ds_read_b128 {vr(F,4)}, v{VX+s}"
            if which == 1: return f"ds_read_b128 {vr(F+4,4)}, v{VA+s} offset:{L_B}"
            if which == 2: return f"ds_read_b128 {vr(F+8,4)}, v{VA+s} offset:{L_B+4096}"
            ft, q = divmod(which - 3, 2)
            return f"ds_read_b64_tr_b16 {vr(F+12+4*ft+2*q,2)}, v{VW} offset:{s*3072+q*256+ft*1024}"
        def mf(set_, i):
            F = FS[set_]
            if i == 0: return f"v_mfma_f32_32x32x16_bf16 {vr(URE,16)}, {vr(F,4)}, {vr(F+4,4)}, {vr(URE,16)}"
            if i == 1: return f"v_mfma_f32_32x32x16_bf16 {vr(UIM,16)}, {vr(F,4)}, {vr(F+8,4)}, {vr(UIM,16)}"
            return f"v_mfma_f32_32x32x16_bf16 {vr(AM[i-2],16)}, {vr(F+12+4*(i-2),4)}, {vr(F,4)}, {vr(AM[i-2],16)}"
        for k in range(9): a(rd(0, 0, k))
        loop0 = len(a.lines)
        a.label("L_C_LOOP")
        for s in range(3):
            cur, nxt = s & 1, (s + 1) & 1
            waits = [7, 8, 8, 8, 8]
            for i in range(5):
                a(f"s_waitcnt lgkmcnt({waits[i]})"); a(mf(cur, i))
                for k in range(2*i, min(2*i + 2, 9)): a(rd(nxt, s + 1, k))
        a("s_waitcnt lgkmcnt(7)"); a(mf(1, 0))
        a(f"s_add_u32 s{S_M3}, s{S_M3}, 1\ns_cmp_eq_u32 s{S_M3}, 4\ns_cselect_b32 s{S_DELTA}, {(-3*SLOT) & 0xffffffff}, s91\ns_cselect_b32 s{S_M3}, 0, s{S_M3}")
        a("s_waitcnt lgkmcnt(6)"); a(mf(1, 1))
        a(f"s_add_u32 s{S_C}, s{S_C}, 1\ns_cmp_eq_u32 s{S_C}, 8\ns_cbranch_scc1 L_C_TAIL")
        a(f"v_add_u32 v{VX}, s{S_DELTA}, v{VX}\nv_add_u32 v{VA}, s{S_DELTA}, v{VA}\nv_add_u32 v{VW}, s{S_DELTA}, v{VW}")
        a("s_waitcnt lgkmcnt(0)\ns_barrier")
        for i in range(2, 5):
            a(mf(1, i))
            for k in range(3*(i-2), 3*(i-2) + 3): a(rd(0, 0, k))
            s = i - 1
            a(f"v_add_u32 v{VX+s}, s{S_DELTA}, v{VX+s}\nv_add_u32 v{VA+s}, s{S_DELTA}, v{VA+s}")
        a("s_branch L_C_LOOP")
        self.loops.append((loop0, len(a.lines)))
        a.label("L_C_TAIL")
        a(f"v_lshlrev_b32 v{T}, 3, v1\nv_add_u32 v{T}, {L_PW}, v{T}\ns_waitcnt lgkmcnt(0)")
        a(f"ds_read_b64 {vr(LAM,2)}, v{T}\nds_read_b64 {vr(COEF,2)}, v{T} offset:{TRW}\nds_read_b64 {vr(MU,2)}, v{T} offset:{2*TRW}")
        for i in range(2, 5): a(mf(1, i))
        stamp(3)
        a(f"v_bfe_u32 v{T}, v1, 2, 1\nv_lshlrev_b32 v{T}, 4, v{T}\nv_and_b32 v{T+1}, 1, v1\nv_lshl_add_u32 v{T}, v{T+1}, 3, v{T}")
        a(f"v_lshrrev_b32 v{T+1}, 3, v1\nv_lshl_add_u32 v{T}, v{T+1}, 1, v{T}\nv_bfe_u32 v{T+1}, v1, 1, 1\nv_add_u32 v{T}, v{T}, v{T+1}\nv_lshlrev_b32 v{T}, 4, v{T}")
        a(f"s_lshl_b32 s{S_T0}, s{S_TT}, 2\ns_add_u32 s{S_T0}, s{S_T0}, s{w}\ns_lshl_b32 s{S_T0}, s{S_T0}, 9\ns_add_u32 s90, s{S_T0}, {WS_ST}")
        a(f"s_mul_i32 s{S_T0}, s{w}, {TRW}\ns_add_u32 s{S_T0}, s{S_T0}, {L_ST}\nv_add_u32 v{T+3}, s{S_T0}, v{T}")
        a("s_waitcnt lgkmcnt(0)")
        self.hprep(MU)
        a(f"v_mov_b32 v{LI}, v{LAM+1}\nv_mov_b32 v{CI}, v{COEF+1}")
        SA, SB = T + 8, T + 12
        cur_re, cur_im = URE, UIM
        dst = SA
        for n in range(1, 8):
            a(f"v_pk_fma_f32 {vr(dst,2)}, {vr(cur_re,2)}, {vr(LAM,2)}, {vr(URE+2*n,2)} op_sel_hi:[1,0,1]")
            a(f"v_pk_fma_f32 {vr(dst+2,2)}, {vr(cur_im,2)}, {vr(LAM,2)}, {vr(UIM+2*n,2)} op_sel_hi:[1,0,1]")
            a(f"v_pk_fma_f32 {vr(dst,2)}, {vr(cur_im,2)}, {vr(LI,2)}, {vr(dst,2)} op_sel_hi:[1,0,1] neg_lo:[0,1,0] neg_hi:[0,1,0]")
            a(f"v_pk_fma_f32 {vr(dst+2,2)}, {vr(cur_re,2)}, {vr(LI,2)}, {vr(dst+2,2)} op_sel_hi:[1,0,1]")
            cur_re, cur_im = dst, dst + 2
            dst = SB if dst == SA else SA
        stamp(23)
        a(f"v_swap_b32 v{cur_re+1}, v{cur_re+2}\nv_add_u32 v{T+1}, {L_E}, v{VE}\nds_write_b128 v{T+1}, {vr(cur_re,4)}")
        a("s_waitcnt lgkmcnt(0)")
        stamp(4)
        a("s_barrier")
        stamp(5)
        TC, TB, O = T + 8, T + 24, T + 40
        def gelu_reads(ft):
            for jj in range(4): a(f"ds_read_b128 {vr(TC+4*jj,4)}, v{T+1} offset:{ft*128+jj*32}")
            for jj in range(4): a(f"ds_read_b128 {vr(TB+4*jj,4)}, v{T+1} offset:{384+ft*128+jj*32}")
        a(f"ds_read_b128 {vr(T+4,4)}, v{T+3}\nv_add_u32 v{T+1}, {L_CS}, v{VHH}")
        gelu_reads(0)
        a(f"s_mov_b32 s{S_T2}, {SPIN}\ns_waitcnt lgkmcnt(8)")
        a.label("L_C_ST")
        a(f"v_cmp_ne_u32 vcc, s{S_TAGG}, v{T+7}\ns_sub_u32 s{S_T2}, s{S_T2}, 1\ns_cmp_eq_u32 s{S_T2}, 0\ns_cbranch_vccz L_C_STOK\ns_cbranch_scc1 L_C_STOK")
        a(f"buffer_load_dwordx4 {vr(T+4,4)}, v{T}, {sr(R_WS,4)}, s90 offen sc1\ns_waitcnt vmcnt(0)\ns_branch L_C_ST")
        a.label("L_C_STOK")
        a(f"v_sub_f32 v{SQ}, 1.0, v{T+6}\nv_sub_f32 v{SM}, 0, v{T+4}\nv_mov_b32 v{SR}, v{T+5}")
        bf16r(SQ, SQ)
        a(f"v_add_f32 v{SQ+1}, v{T+6}, v{T+6}\nv_max_f32 v{SQ}, {fh(1e-30)}, v{SQ}\ns_lshl_b32 s{S_T0}, s{w}, 7\nv_rcp_f32 v{SQ}, v{SQ}")
        a(f"s_add_u32 s{S_T0}, s{S_T0}, {L_G2}\nv_lshl_add_u32 v{T}, v1, 2, s{S_T0}\nds_write_b32 v{T}, v{SQ+1}")
        VST = VL16
        if self.opt.get("nost"):
            VST = 172; a(f"v_mov_b32 v172, {OOB}")
        def gelu(ft):
            A = AM[ft]
            a(f"s_waitcnt lgkmcnt({5 if ft == 0 else 4})")
            for p in range(8): a(f"v_pk_fma_f32 {vr(A+2*p,2)}, {vr(TC+2*p,2)}, {vr(SM,2)}, {vr(A+2*p,2)} op_sel_hi:[1,0,1]")
            a("s_waitcnt lgkmcnt(0)")
            for p in range(8): a(f"v_pk_fma_f32 {vr(A+2*p,2)}, {vr(A+2*p,2)}, {vr(SR,2)}, {vr(TB+2*p,2)} op_sel_hi:[1,0,1]")
            X = T + 48
            for p in range(8): a(f"v_pk_mul_f32 {vr(X+2*p,2)}, {vr(A+2*p,2)}, {vr(A+2*p,2)}")
            if ft < 2: gelu_reads(ft + 1)
            for p in range(8): a(f"v_pk_fma_f32 {vr(X+2*p,2)}, {vr(X+2*p,2)}, {sr(S_K,2)}, {sr(S_K,2)} op_sel:[0,0,1] op_sel_hi:[1,0,1]")
            for p in range(8): a(f"v_pk_mul_f32 {vr(X+2*p,2)}, {vr(X+2*p,2)}, {vr(A+2*p,2)}")
            for r in range(16): a(f"v_exp_f32 v{X+r}, v{X+r}")
            for p in range(8): a(f"v_pk_fma_f32 {vr(X+2*p,2)}, {vr(X+2*p,2)}, {vr(SQ,2)}, {vr(SQ,2)} op_sel_hi:[1,0,0]")
            for r in range(16): a(f"v_rcp_f32 v{X+r}, v{X+r}")
            for p in range(8): a(f"v_pk_mul_f32 {vr(X+2*p,2)}, {vr(X+2*p,2)}, {vr(A+2*p,2)}")
            a(f"s_add_u32 s{S_T0}, s{S_CT0}, {ft}\ns_lshl_b32 s{S_T0}, s{S_T0}, 13\ns_add_u32 s{S_T0}, s{S_T0}, s{S_HO}\ns_add_u32 s{S_T1}, s{S_T0}, 4096")
            for p in range(8): a(f"v_cvt_pk_bf16_f32 v{A+p}, v{X+2*p}, v{X+2*p+1}")
            stamp(17 + ft)
            vm.op(f"buffer_store_dwordx4 {vr(A,4)}, v{VST}, {sr(R_WS,4)}, s{S_T0} offen {self.opt_s('hst','sc1')}", f"st{ft}")
            vm.op(f"buffer_store_dwordx4 {vr(A+4,4)}, v{VST}, {sr(R_WS,4)}, s{S_T1} offen {self.opt_s('hst','sc1')}", f"st{ft}")
        def flag(stage):
            vm.op(f"buffer_store_dword v{T+2}, v{VFL}, {sr(R_WS,4)}, s{S_FLO} offen offset:{stage*128} sc1", "fl")
        a(f"v_mov_b32 v{T+2}, s{S_TAGG}")
        gelu(0)
        stamp(6)
        gelu(1)
        vm.wait("st0"); flag(0)
        stamp(7)
        a(f"s_cmp_eq_u32 s{S_NT}, 2\ns_cbranch_scc1 L_C_NOT2")
        q_save = list(vm.q)
        gelu(2)
        vm.wait("st1"); flag(1)
        a("s_branch L_C_T2DONE")
        a.label("L_C_NOT2")
        q_a = list(vm.q); vm.q = q_save
        a("s_waitcnt lgkmcnt(0)")
        vm.wait("st1"); flag(1)
        a.label("L_C_T2DONE")
        vm.q = q_a
        stamp(8)
        a(f"v_mov_b32 v{T}, {L_HF}\ns_mov_b32 s{S_T2}, {SPIN*8}")
        a.label("L_C_HW")
        a(f"ds_read_b32 v{T+1}, v{T}\ns_sub_u32 s{S_T2}, s{S_T2}, 1\ns_waitcnt lgkmcnt(0)\nv_cmp_eq_u32 vcc, 0, v{T+1}\ns_cmp_eq_u32 s{S_T2}, 0\ns_cbranch_scc1 L_C_HOK\ns_cbranch_vccnz L_C_HW")
        a.label("L_C_HOK")
        stamp(9)
        RA, RB, EE, G2 = T + 4, T + 6, T + 8, T + 24
        a(f"v_lshlrev_b32 v{T}, 3, v1\nv_add_u32 v{T}, {L_H}, v{T}\nds_read_b64 {vr(RA,2)}, v{T}")
        a(f"v_lshlrev_b32 v{T}, 4, v1\nv_add_u32 v{T}, {L_E}, v{T}\ns_mov_b32 s{S_T2}, s{w}")
        a(f"s_lshl_b32 s{S_T0}, s{w}, 7\ns_add_u32 s{S_T0}, s{S_T0}, {L_G2}\nv_add_u32 v{T+1}, s{S_T0}, v{VHH}")
        for jj in range(4): a(f"ds_read_b128 {vr(G2+4*jj,4)}, v{T+1} offset:{jj*32}")
        a.label("L_C_HL")
        a(f"ds_read_b128 {vr(EE,4)}, v{T}\nds_read_b128 {vr(EE+4,4)}, v{T} offset:512\nv_add_u32 v{T}, 1024, v{T}\ns_cmp_eq_u32 s{S_T2}, 0\ns_waitcnt lgkmcnt(0)\ns_cbranch_scc1 L_C_HD")
        horner(RA, MU, EE, RB); horner(RB, MU, EE+2, RA); horner(RA, MU, EE+4, RB); horner(RB, MU, EE+6, RA)
        a(f"s_sub_u32 s{S_T2}, s{S_T2}, 1\ns_branch L_C_HL")
        a.label("L_C_HD")
        R2, R3, CC = T + 16, T + 18, T + 20
        horner(RA, MU, EE, RB); horner(RB, MU, EE+2, R2); horner(R2, MU, EE+4, R3)
        a(f"v_cmp_eq_u32 vcc, 1, v2")
        vm.wait("st2"); flag(2)
        stamp(20)
        a(f"v_cndmask_b32 v{CC}, v{RA}, v{R2}, vcc\nv_cndmask_b32 v{CC+1}, v{RB}, v{R3}, vcc\nv_cndmask_b32 v{CC+2}, v{RA+1}, v{R2+1}, vcc\nv_cndmask_b32 v{CC+3}, v{RB+1}, v{R3+1}, vcc")
        PRE, PIM, OR, OI = T + 40, T + 48, T + 56, T + 58
        cur_re, cur_im = CC, CC + 2
        def post(n):
            u, v = URE + 2*n, UIM + 2*n
            a(f"v_pk_mul_f32 {vr(OR,2)}, {vr(u,2)}, {vr(COEF,2)} op_sel_hi:[1,0]")
            a(f"v_pk_mul_f32 {vr(OI,2)}, {vr(v,2)}, {vr(COEF,2)} op_sel_hi:[1,0] neg_lo:[0,1] neg_hi:[0,1]")
            a(f"v_pk_fma_f32 {vr(OR,2)}, {vr(v,2)}, {vr(CI,2)}, {vr(OR,2)} op_sel_hi:[1,0,1] neg_lo:[0,1,0] neg_hi:[0,1,0]")
            a(f"v_pk_fma_f32 {vr(OI,2)}, {vr(u,2)}, {vr(CI,2)}, {vr(OI,2)} op_sel_hi:[1,0,1] neg_lo:[0,1,0] neg_hi:[0,1,0]")
            a(f"v_pk_mul_f32 {vr(OR,2)}, {vr(OR,2)}, {vr(G2+2*n,2)}\nv_pk_mul_f32 {vr(OI,2)}, {vr(OI,2)}, {vr(G2+2*n,2)}")
            a(f"v_cvt_pk_bf16_f32 v{PRE+n}, v{OR}, v{OR+1}\nv_cvt_pk_bf16_f32 v{PIM+n}, v{OI}, v{OI+1}")
        for n in range(8):
            u, v = URE + 2*n, UIM + 2*n
            a(f"v_pk_fma_f32 {vr(u,2)}, {vr(cur_re,2)}, {vr(LAM,2)}, {vr(u,2)} op_sel_hi:[1,0,1]")
            a(f"v_pk_fma_f32 {vr(v,2)}, {vr(cur_im,2)}, {vr(LAM,2)}, {vr(v,2)} op_sel_hi:[1,0,1]")
            a(f"v_pk_fma_f32 {vr(u,2)}, {vr(cur_im,2)}, {vr(LI,2)}, {vr(u,2)} op_sel_hi:[1,0,1] neg_lo:[0,1,0] neg_hi:[0,1,0]")
            a(f"v_pk_fma_f32 {vr(v,2)}, {vr(cur_re,2)}, {vr(LI,2)}, {vr(v,2)} op_sel_hi:[1,0,1]")
            cur_re, cur_im = u, v
            if n > 0: post(n - 1)
        post(7)
        a(f"s_mul_i32 s{S_T0}, s{w}, 2560\ns_add_u32 s{S_T0}, s{S_T0}, {L_TR}\nv_mul_u32_u24 v{T}, 80, v1\nv_lshl_add_u32 v{T}, v2, 5, v{T}\nv_add_u32 v{T}, s{S_T0}, v{T}")
        a(f"v_bfe_u32 v{T+1}, v0, 2, 2\nv_lshl_add_u32 v{T+1}, v2, 3, v{T+1}\nv_mul_u32_u24 v{T+1}, 80, v{T+1}\nv_and_b32 v{T+3}, 1, v0\nv_lshl_add_u32 v{T+1}, v{T+3}, 5, v{T+1}")
        a(f"v_bfe_u32 v{T+3}, v0, 4, 1\nv_lshl_add_u32 v{T+1}, v{T+3}, 4, v{T+1}\nv_bfe_u32 v{T+3}, v0, 1, 1\nv_lshl_add_u32 v{T+1}, v{T+3}, 3, v{T+1}\nv_add_u32 v{T+1}, s{S_T0}, v{T+1}")
        HF = 16
        for part, PK in enumerate((PRE, PIM)):
            a(f"ds_write_b128 v{T}, {vr(PK,4)}\nds_write_b128 v{T}, {vr(PK+4,4)} offset:16")
            for sp in range(2):
                for q in range(2):
                    a(f"ds_read_b64_tr_b16 {vr(HF+8*part+4*sp+2*q,2)}, v{T+1} offset:{(16*sp+4*q)*80}")
        a(f"s_lshl_b32 s{S_T0}, s{S_J}, 14\ns_add_u32 s{S_T0}, s{S_T0}, s{S_HO}\ns_add_u32 s{S_T0}, s{S_T0}, {86*4096}")
        for k in range(4):
            a(f"s_waitcnt lgkmcnt({[8,6,2,0][k]})")
            vm.op(f"buffer_store_dwordx4 {vr(HF+4*k,4)}, v{VST}, {sr(R_WS,4)}, s{S_T0} offen {self.opt_s('hst','sc1')}", "st3")
            if k < 3: a(f"s_add_u32 s{S_T0}, s{S_T0}, 4096")
        stamp(10)
        vm.wait("st3"); flag(3)
        stamp(11)
        XV, DK, B2, GV, TM = 32, 40, 42, 64, 48
        VROW, VRD = T, T + 1
        a(f"v_lshrrev_b32 v{T+3}, 4, v0\nv_and_b32 v{T+4}, 1, v{T+3}\nv_lshlrev_b32 v{T+4}, 3, v{T+4}\nv_lshrrev_b32 v{T+5}, 1, v{T+3}\nv_add_u32 v{VROW}, v{T+4}, v{T+5}\nv_and_b32 v{T+6}, 15, v0")
        a(f"s_lshl_b32 s90, s{S_TT}, 7\ns_lshl_b32 s{S_T0}, s{S_TH}, 6\ns_add_u32 s90, s90, s{S_T0}\ns_lshr_b32 s{S_T0}, s{w}, 1\ns_lshl_b32 s{S_T0}, s{S_T0}, 5\ns_add_u32 s90, s90, s{S_T0}\ns_and_b32 s{S_T0}, s{w}, 1\ns_lshl_b32 s{S_T0}, s{S_T0}, 2\ns_add_u32 s90, s90, s{S_T0}")
        a(f"s_lshl_b32 s91, s90, 10\ns_lshl_b32 s{S_T0}, s{S_DN}, 7\ns_add_u32 s91, s91, s{S_T0}\nv_lshlrev_b32 v{T+4}, 10, v{VROW}\nv_lshl_add_u32 v{T+4}, v{T+6}, 3, v{T+4}\nv_lshl_add_u32 v{T+5}, v{T+6}, 3, s{S_T0}")
        roff = [16*(i & 1) + 2*(i >> 1) for i in range(4)]
        for i in range(4):
            a(f"s_add_u32 s{S_T1}, s91, {roff[i]*1024}")
            vm.op(f"buffer_load_dwordx2 {vr(XV+2*i,2)}, v{T+4}, {sr(R_X,4)}, s{S_T1} offen", "ep")
        vm.op(f"global_load_dwordx2 {vr(DK,2)}, v{T+5}, {sr(P_DSK,2)}", "ep")
        vm.op(f"global_load_dwordx2 {vr(B2,2)}, v{T+5}, {sr(P_B2,2)}", "ep")
        a(f"s_lshl_b32 s93, s90, 4\ns_add_u32 s93, s93, {WS_ST+8}\nv_lshlrev_b32 v{T+7}, 4, v{VROW}")
        for i in range(4): vm.op(f"buffer_load_dwordx2 {vr(GV+2*i,2)}, v{T+7}, {sr(R_WS,4)}, s93 offen offset:{roff[i]*16} sc1", "ep")
        a(f"s_lshr_b32 s{S_T0}, s{w}, 1\ns_mul_i32 s{S_T0}, s{S_T0}, {SLOT}\ns_and_b32 s{S_T1}, s{w}, 1\ns_mul_i32 s{S_T1}, s{S_T1}, {16*272}\ns_add_u32 s{S_T0}, s{S_T0}, s{S_T1}")
        a(f"v_mul_u32_u24 v{VRD}, 272, v{T+3}\nv_lshl_add_u32 v{VRD}, v{T+6}, 4, v{VRD}\nv_add_u32 v{VRD}, s{S_T0}, v{VRD}")
        a(f"v_lshlrev_b32 v{VROW}, 11, v{VROW}\nv_lshl_add_u32 v{VROW}, v{T+6}, 4, v{VROW}\ns_lshl_b32 s90, s90, 11\ns_lshl_b32 s{S_T0}, s{S_DN}, 8\ns_add_u32 s90, s90, s{S_T0}")
        a(f"s_mov_b32 s{S_T2}, {SPIN}")
        a.label("L_C_GW")
        a(f"s_waitcnt vmcnt(0)\ns_mov_b64 s[94:95], 0\ns_sub_u32 s{S_T2}, s{S_T2}, 1")
        for i in range(4): a(f"v_cmp_ne_u32 vcc, s{S_TAGG}, v{GV+2*i+1}\ns_or_b64 s[94:95], s[94:95], vcc")
        a(f"s_cmp_eq_u64 s[94:95], 0\ns_cbranch_scc1 L_C_GOK\ns_cmp_eq_u32 s{S_T2}, 0\ns_cbranch_scc1 L_C_GOK")
        for i in range(4): a(f"buffer_load_dwordx2 {vr(GV+2*i,2)}, v{T+7}, {sr(R_WS,4)}, s93 offen offset:{roff[i]*16} sc1")
        a("s_branch L_C_GW")
        a.label("L_C_GOK")
        vm.q = []
        DF, BF, XF = T + 8, T + 12, T + 16
        for k in range(2):
            a(f"v_lshlrev_b32 v{DF+2*k}, 16, v{DK+k}\nv_and_b32 v{DF+2*k+1}, 0xffff0000, v{DK+k}\nv_lshlrev_b32 v{BF+2*k}, 16, v{B2+k}\nv_and_b32 v{BF+2*k+1}, 0xffff0000, v{B2+k}")
        for i in range(4):
            g, om = GV + 2*i, T + 21
            a(f"v_sub_f32 v{om}, 1.0, v{g}")
            bf16r(om, om)
            for k in range(2):
                a(f"v_lshlrev_b32 v{XF+2*k}, 16, v{XV+2*i+k}\nv_and_b32 v{XF+2*k+1}, 0xffff0000, v{XV+2*i+k}")
                a(f"v_mul_f32 v{XF+2*k}, v{XF+2*k}, v{DF+2*k}\nv_mul_f32 v{XF+2*k+1}, v{XF+2*k+1}, v{DF+2*k+1}\nv_cvt_pk_bf16_f32 v{T+22}, v{XF+2*k}, v{XF+2*k+1}")
                a(f"v_lshlrev_b32 v{XF+2*k}, 16, v{T+22}\nv_and_b32 v{XF+2*k+1}, 0xffff0000, v{T+22}")
                for z in range(2):
                    a(f"v_mul_f32 v{TM+4*i+2*k+z}, v{BF+2*k+z}, v{om}\nv_fmac_f32 v{TM+4*i+2*k+z}, v{XF+2*k+z}, v{g}")
        stamp(12)
        a("s_barrier")
        stamp(13)
        PT = 64
        for i in range(4):
            for u in range(4): a(f"ds_read_b128 {vr(PT+16*i+4*u,4)}, v{VRD} offset:{u*PIECE_U+i*4*272}")
        for i in range(4):
            a(f"s_waitcnt lgkmcnt({12-4*i})")
            for u in range(4):
                for k in range(2): a(f"v_pk_add_f32 {vr(TM+4*i+2*k,2)}, {vr(TM+4*i+2*k,2)}, {vr(PT+16*i+4*u+2*k,2)}")
            a(f"s_add_u32 s{S_T1}, s90, {roff[i]*2048}")
            vm.op(f"buffer_store_dwordx4 {vr(TM+4*i,4)}, v{VROW}, {sr(R_OUT,4)}, s{S_T1} offen{' sc1' if self.opt.get('outsc1', 1) else ''}", "out")
        a(f"s_or_b32 s{S_T0}, s{S_J}, s{w}\ns_cmp_lg_u32 s{S_T0}, 0\ns_cbranch_scc1 L_C_DONE\ns_lshl_b32 s{S_T0}, s{S_TT}, 7\ns_add_u32 s{S_T0}, s{S_T0}, {WS_WG}")
        a(f"buffer_store_dword v{T+2}, v{VFL}, {sr(R_WS,4)}, s{S_T0} offen sc1")
        a.label("L_C_DONE")
        pr = self.opt.get("probe", 0)
        if pr:
            a(f"s_waitcnt vmcnt(0)\ns_mov_b32 s{R_WS+2}, 0x8000000\ns_lshl_b32 s{S_T0}, s2, 2\ns_add_u32 s{S_T0}, s{S_T0}, s{w}\ns_mul_i32 s{S_T0}, s{S_T0}, 20480\ns_add_u32 s{S_T0}, s{S_T0}, 0x2000000")
            if pr == 1:
                a(f"s_mov_b32 s{S_T1}, 500")
                a.label("L_PRB")
                a(f"s_nop 15\ns_nop 15\ns_sub_u32 s{S_T1}, s{S_T1}, 1\ns_cmp_lg_u32 s{S_T1}, 0\ns_cbranch_scc1 L_PRB")
            for i in range(20):
                if pr == 2: a(f"buffer_store_dwordx4 v[16:19], v{VL16}, {sr(R_WS,4)}, s{S_T0} offen sc1\ns_add_u32 s{S_T0}, s{S_T0}, 1024")
                if pr == 3: a(f"buffer_load_dwordx4 v[16:19], v{VL16}, {sr(R_WS,4)}, s{S_T0} offen sc1\ns_add_u32 s{S_T0}, s{S_T0}, 1024")
                if pr == 4: a(f"buffer_store_dwordx4 v[16:19], v{VL16}, {sr(R_WS,4)}, s{S_T0} offen\ns_add_u32 s{S_T0}, s{S_T0}, 1024")
            a("s_waitcnt vmcnt(0)")
        if self.prof:
            a("s_waitcnt vmcnt(0)"); stamp(14)
            a("s_memrealtime s[100:101]\ns_waitcnt lgkmcnt(0)\nv_writelane_b32 v3, s100, 62")
            self.prof_store()
        a("s_endpgm")
        a.label("L_CODE_END")

    def build(self):
        self.common(); self.loader(); self.compute()
        a = self.a
        msgs = check_hazards(a.lines, "linear")
        for l0, l1 in self.loops: msgs += check_hazards(a.lines[l0:l1] + a.lines[l0:l1], "loop")
        for m in msgs: print("HAZARD", m, file=sys.stderr)
        hdr = open("gated_mix__ssm_conv_s5__mixer_channel_mlp__prompt.s.ref").read().split("; Override")[0]
        out = hdr + "; Override launch geometry by editing the next line (default: block=256,\n; grid=ceil(out_elems/256), lds=0). Harness parses it; keep it on one line.\n"
        out += "; @launch grid=(256,1,1) block=(512,1,1) lds=163840\n"
        out += f'.amdgcn_target "amdgcn-amd-amdhsa--gfx950"\n.text\n.globl {KNAME}\n.p2align 8\n.type {KNAME},@function\n{KNAME}:\n'
        out += a.text()
        out += f""".section .rodata,"a"
.p2align 6
.amdhsa_kernel {KNAME}
  .amdhsa_next_free_vgpr 256
  .amdhsa_next_free_sgpr 102
  .amdhsa_accum_offset 256
  .amdhsa_group_segment_fixed_size 0
  .amdhsa_kernarg_size 144
  .amdhsa_user_sgpr_count 2
  .amdhsa_user_sgpr_kernarg_segment_ptr 1
  .amdhsa_system_sgpr_workgroup_id_x 1
.end_amdhsa_kernel
"""
        return out

if __name__ == "__main__":
    prof = "--prof" in sys.argv
    opt = {}
    for x in sys.argv[1:]:
        if x.startswith("--") and "=" in x:
            k, v = x[2:].split("="); opt[k] = int(v)
    out = [x for x in sys.argv[1:] if not x.startswith("--")]
    open(out[0], "w").write(G(prof, **opt).build())
```
